```python
import torch

def _softmax(x, axis=-1):
    return torch.softmax(x, dim=axis)
def _gelu(x):
    return torch.nn.functional.gelu(x, approximate="tanh")
def _silu(x):
    return torch.nn.functional.silu(x)
def _sigmoid(x):
    return torch.sigmoid(x)
def _layernorm(x, axis=-1, eps=1e-5):
    m = x.mean(dim=axis, keepdim=True)
    v = x.var(dim=axis, keepdim=True, unbiased=False)
    return (x - m) / torch.sqrt(v + eps)
def _scatter_add(tgt, idx, src, axis=0):
    return tgt.clone().index_add_(axis, idx, src)
def _segment_sum(src, seg, n):
    out = torch.zeros((n,) + src.shape[1:], dtype=src.dtype)
    return out.index_add_(0, seg, src)
def _pad(x, pw):
    flat = tuple(v for pair in reversed(pw) for v in pair)
    return torch.nn.functional.pad(x, flat)

kernel_name = 'standalone__batchnorm__sampling'

def setup_inputs():

    _w = (lambda a: (lambda t: t.to(torch.bfloat16) if t.is_floating_point() else t)(torch.as_tensor(a)))
    B, S, C = 1024, 8, 640
    K = 3
    return {
        "x": _w((lambda *s: torch.randn(*s, dtype=torch.bfloat16) * 0.05)(B, S, C)),
        "w": _w((lambda *s: torch.randn(*s, dtype=torch.bfloat16) * 0.05)(K, C, C) * (1.0 / (K * C) ** 0.5)),
        "mean": _w((lambda *s: torch.randn(*s, dtype=torch.bfloat16) * 0.05)(C) * 0.1),
        "var": _w(torch.abs((lambda *s: torch.randn(*s, dtype=torch.bfloat16) * 0.05)(C)) + 0.5),
        "g": _w((lambda *s: torch.randn(*s, dtype=torch.bfloat16) * 0.05)(C) + 1.0),
        "b": _w((lambda *s: torch.randn(*s, dtype=torch.bfloat16) * 0.05)(C) * 0.1),
    }

def reference(x, w, mean, var, g, b):
    K = 3
    P = K // 2
    S = x.shape[1]
    xp = _pad(x, ((0, 0), (P, P), (0, 0)))
    y = sum(torch.einsum('bsc,cd->bsd', xp[:, k:k + S, :], w[k]) for k in range(K))
    inv_std = 1.0 / torch.sqrt(var + 1e-5)
    y = (y - mean) * (g * inv_std) + b
    return _silu(y)
```

```python
import sys
NAME="standalone__batchnorm__sampling_kernel"
HEADER=open('standalone__batchnorm__sampling.s.ref').read().split('; Override launch')[0]

XSLOT=32768; WSLOT=15424; WBASE=3*XSLOT; LDS_BYTES=WBASE+4*WSLOT
ACC=16
SP=96
TP=116
VX=136
VW=140
VXL=144
VXA=146
VWL=147
VWA=148
VO=149
VO5=150
TMP=152
NV=192
def acc(sig,t): return ACC+(sig*5+t)*4
def fx(setn,f): return setn*80+f*4
def fw(setn,k,t): return setn*80+20+(k*5+t)*4

def gen(opt):
    L=[]; A=L.append
    stamps=opt.get('stamps',False)
    A(HEADER.rstrip())
    A(f"; @launch grid=(256,1,1) block=(256,1,1) lds={LDS_BYTES}")
    A('.amdgcn_target "amdgcn-amd-amdhsa--gfx950"')
    A(".text"); A(f".globl {NAME}"); A(".p2align 8"); A(f".type {NAME},@function"); A(f"{NAME}:")
    A("s_cmp_ge_u32 s2, 256"); A("s_cbranch_scc1 L_end")
    if stamps:
        A("s_memrealtime s[60:61]"); A("s_memtime s[64:65]")
    A("s_load_dwordx4 s[4:7], s[0:1], 0")
    A("s_load_dwordx4 s[8:11], s[0:1], 16")
    A("s_load_dwordx4 s[12:15], s[0:1], 32")
    A("s_load_dwordx2 s[16:17], s[0:1], 48")
    if stamps: A("s_load_dwordx2 s[18:19], s[0:1], 64")
    A("v_lshrrev_b32 v1, 6, v0"); A("v_and_b32 v0, 63, v0")
    A("v_lshrrev_b32 v2, 4, v0")
    A("v_readfirstlane_b32 s32, v1")
    A("v_and_b32 v3, 15, v0")
    A("s_and_b32 s33, s2, 7"); A("s_lshr_b32 s34, s2, 3"); A("s_lshr_b32 s35, s34, 3"); A("s_and_b32 s34, s34, 7")
    A("s_lshl_b32 s33, s33, 2"); A("s_add_u32 s33, s33, s35")
    A("s_lshr_b32 s35, s32, 1"); A("s_and_b32 s36, s32, 1")
    A("s_mul_i32 s44, s34, 160"); A("v_lshlrev_b32 v4, 3, v2"); A("v_add_u32 v4, s44, v4")
    A("v_lshrrev_b32 v5, 3, v0")
    A("v_and_b32 v6, 7, v0"); A("v_xor_b32 v6, v6, v2")
    A("s_mov_b32 s45, 10240"); A("v_mul_lo_u32 v5, v5, s45")
    A("v_lshlrev_b32 v7, 4, v6"); A("v_xor_b32 v6, 4, v6"); A("v_lshlrev_b32 v6, 4, v6")
    A(f"v_add_u32 v{VX}, v5, v7")
    A(f"v_add_u32 v{VX+1}, v5, v6"); A(f"v_add_u32 v{VX+1}, {81920-1024}, v{VX+1}")
    A(f"v_add_u32 v{VX+2}, {2*(81920-1024)}, v{VX}")
    A(f"v_add_u32 v{VX+3}, {2*(81920-1024)}, v{VX+1}")
    A("s_mul_i32 s45, s32, 240")
    for jj in range(4):
        A(f"v_add_u32 v5, s45, v0");
        if jj: A(f"v_add_u32 v5, {60*jj}, v5")
        A("v_mul_u32_u24 v6, 0xcccd, v5"); A("v_lshrrev_b32 v6, 19, v6")
        A("v_mul_u32_u24 v7, 10, v6"); A("v_sub_u32 v7, v5, v7")
        A("v_min_u32 v6, 95, v6")
        A("v_lshrrev_b32 v8, 5, v6"); A("v_and_b32 v6, 31, v6")
        A("v_and_b32 v9, 4, v6"); A("v_lshlrev_b32 v9, 1, v9"); A("v_and_b32 v10, 8, v6"); A("v_lshrrev_b32 v10, 1, v10")
        A("v_and_b32 v6, 0x13, v6"); A("v_or3_b32 v6, v6, v9, v10")
        A("s_mov_b32 s46, 819200"); A("v_mul_lo_u32 v8, v8, s46"); A("v_mul_u32_u24 v6, 1280, v6")
        A("v_lshlrev_b32 v7, 4, v7"); A("v_add3_u32 v6, v6, v8, v7")
        A(f"v_add_u32 v{VW+jj}, s44, v6")
        if jj: A(f"v_subrev_u32 v{VW+jj}, {960*jj}, v{VW+jj}")
    A("s_mul_i32 s37, s33, 327680"); A("s_mul_i32 s45, s32, 1280"); A("s_add_u32 s37, s37, s45")
    A("s_mov_b32 s38, 0")
    A("s_lshl_b32 s40, s32, 12"); A("s_add_u32 s41, s40, 16384")
    A("s_mul_i32 s42, s32, 3840"); A(f"s_add_u32 s42, s42, {WBASE}")
    A("s_waitcnt lgkmcnt(0)")
    A("s_mov_b32 s20, s4"); A("s_mov_b32 s21, s5"); A("s_mov_b32 s22, 10485760"); A("s_mov_b32 s23, 0x20000")
    A("s_mov_b32 s24, s6"); A("s_mov_b32 s25, s7"); A("s_mov_b32 s26, 2457600"); A("s_mov_b32 s27, 0x20000")
    A("s_mov_b32 s28, s16"); A("s_mov_b32 s29, s17"); A("s_mov_b32 s30, 10485760"); A("s_mov_b32 s31, 0x20000")
    for pi,sp in enumerate(["s[8:9]","s[10:11]","s[12:13]","s[14:15]"]):
        for t in range(5):
            r=TMP+(pi*5+t)*2
            A(f"global_load_dwordx2 v[{r}:{r+1}], v4, {sp} offset:{t*32}")
    def dma_x(slot_expr_reg, h, soff, lst):
        lst.append(f"s_add_u32 m0, {slot_expr_reg}, s{40+h}")
        for jj in range(4):
            lst.append(f"buffer_load_dwordx4 v{VX+jj}, s[20:23], {soff} offen offset:{jj*1024} lds" if jj else f"buffer_load_dwordx4 v{VX}, s[20:23], {soff} offen lds")
    def dma_w(slot_reg, soff, lst):
        lst.append(f"s_add_u32 m0, {slot_reg}, s42")
        for jj in range(4):
            lst.append(f"buffer_load_dwordx4 v{VW+jj}, s[24:27], {soff} offen offset:{jj*960} lds" if jj else f"buffer_load_dwordx4 v{VW}, s[24:27], {soff} offen lds")
    def emit_group(lst):
        for i,x in enumerate(lst):
            A(x)
            if i==0: A("s_nop 0")
    A("s_mov_b32 s47, 0"); A(f"s_mov_b32 s48, {XSLOT}"); A(f"s_mov_b32 s49, {2*XSLOT}")
    def pw(j):
        l=[]; A(f"s_mov_b32 s50, {j*WSLOT}"); A(f"s_mov_b32 s51, {j*40960}"); dma_w("s50","s51",l); emit_group(l)
    def px(X,h):
        l=[]; A(f"s_add_u32 s51, s37, {X*128+h*5120}"); dma_x(["s47","s48","s49"][X],h,"s51",l); emit_group(l)
    pw(0); px(0,0); px(0,1); pw(1); px(1,0); pw(2); px(1,1); pw(3); px(2,0)
    A("v_lshrrev_b32 v5, 1, v3"); A("v_xor_b32 v5, v5, v2"); A("v_lshlrev_b32 v5, 4, v5")
    A("v_lshlrev_b32 v6, 7, v3"); A("v_add_u32 v5, v5, v6")
    A("s_lshl_b32 s45, s35, 11"); A("s_mul_i32 s46, s36, 12288"); A("s_add_u32 s45, s45, s46")
    A(f"v_add_u32 v{VXL}, s45, v5"); A(f"v_xor_b32 v{VXL+1}, 64, v{VXL}")
    A("v_lshrrev_b32 v5, 1, v2"); A("v_lshlrev_b32 v5, 4, v5"); A("v_and_b32 v6, 1, v2"); A("v_lshlrev_b32 v6, 2, v6")
    A("v_bfe_u32 v7, v0, 2, 2"); A("v_add3_u32 v5, v5, v6, v7"); A("v_mul_u32_u24 v5, 160, v5")
    A("v_and_b32 v6, 3, v0"); A("v_lshlrev_b32 v6, 3, v6"); A("v_add_u32 v5, v5, v6"); A(f"v_add_u32 v{VWL}, {WBASE}, v5")
    A("s_lshl_b32 s45, s35, 4"); A("v_add_u32 v5, s45, v3"); A("s_mov_b32 s46, 10240"); A("v_mul_lo_u32 v5, v5, s46")
    A("v_and_b32 v6, 1, v2"); A("v_lshrrev_b32 v7, 1, v2"); A("v_lshlrev_b32 v7, 4, v7")
    A("v_add_u32 v5, v5, v7")
    A("v_lshlrev_b32 v8, 5, v6"); A(f"v_add_u32 v{VO}, v5, v8")
    A("v_mul_u32_u24 v8, 1280, v6"); A(f"v_add_u32 v{VO5}, v5, v8"); A(f"v_add_u32 v{VO5}, 128, v{VO5}")
    for r in range(ACC,ACC+80): A(f"v_mov_b32 v{r}, 0")
    A("s_waitcnt vmcnt(36)")
    A("s_mov_b32 s52, 0x3fb8aa3b"); A("s_mov_b32 s53, 0x3fb8aa3b")
    for t in range(5):
        for hf in range(2):
            m=TMP+(0*5+t)*2+hf; va=TMP+(1*5+t)*2+hf; g=TMP+(2*5+t)*2+hf; b=TMP+(3*5+t)*2+hf
            for e in range(2):
                S=SP+t*4+hf*2+e; T=TP+t*4+hf*2+e
                def ex(dst,src):
                    if e==0: A(f"v_lshlrev_b32 v{dst}, 16, v{src}")
                    else: A(f"v_and_b32 v{dst}, 0xffff0000, v{src}")
                ex(5,va); A("v_add_f32 v5, 0x3727c5ac, v5"); A("v_rsq_f32 v5, v5")
                ex(6,g); ex(7,m); ex(8,b)
                A("v_mul_f32 v5, v5, v6")
                A(f"v_fma_f32 v8, -v7, v5, v8")
                A(f"v_mul_f32 v{S}, s52, v5"); A(f"v_mul_f32 v{T}, s52, v8")
    if stamps: A("s_memtime s[66:67]")
    A("s_cmp_eq_u32 s36, 1"); A("s_cbranch_scc1 L_sh1")
    for sh in range(2):
        if sh==1: A("L_sh1:")
        def fidx(sig,k):
            f = sig+k-1 if sh==0 else sig+k
            return f if 0<=f<=4 else None
        mf=[(k,t,sig) for k in range(3) for t in range(5) for sig in range(4) if fidx(sig,k) is not None]
        def reads(setn):
            l=[]
            xs=[f"ds_read_b128 a[{fx(setn,f)}:{fx(setn,f)+3}], v{VXA} offset:{f*4096}" for f in range(5)]
            ws=[]
            for k in range(3):
                for t in range(5):
                    for hh in range(2):
                        r=fw(setn,k,t)+hh*2
                        ws.append(f"ds_read_b64_tr_b16 a[{r}:{r+1}], v{VWA} offset:{k*5120+hh*1280+t*32}")
            return xs+ws
        A("s_waitcnt vmcnt(24)"); A("s_barrier")
        if stamps and sh==0: A("s_memtime s[68:69]")
        if stamps and sh==1: A("s_memtime s[68:69]")
        A(f"v_add_u32 v{VXA}, s47, v{VXL}"); A(f"v_mov_b32 v{VWA}, v{VWL}")
        for i,r in enumerate(reads(0)):
            A(r)
            if i%10==9: A("s_waitcnt lgkmcnt(4)")
        A("s_waitcnt vmcnt(20) lgkmcnt(0)"); A("s_barrier")
        A("s_mov_b32 s39, 0"); A(f"s_mov_b32 s54, {WSLOT}"); A("s_mov_b32 s55, 0"); A(f"s_mov_b32 s38, {4*40960}")
        A(f"s_add_u32 s56, s37, {2*128+5120}")
        A(f"L_loop{sh}:")
        for par in range(2):
            cur=par; nxt=1-par
            others=[]
            pre=[]
            if par==0: pre.append(f"v_add_u32 v{VXA}, s47, v{VXL+1}")
            else:      pre.append(f"v_add_u32 v{VXA}, s48, v{VXL}")
            pre.append(f"v_add_u32 v{VWA}, s54, v{VWL}")
            rd=reads(nxt) if opt.get('reads',True) else []
            dm=[]
            if opt.get('dma',True):
                dw=[]; dma_w("s55","s38",dw)
                dx=[]
                if par==0: dma_x("s49",1,"s56",dx)
                else:      dma_x("s47",0,"s56",dx)
                dm=[dw,dx]
            book=[]
            book.append("s_mov_b32 s55, s54")
            book.append(f"s_add_u32 s54, s54, {WSLOT}"); book.append(f"s_cmp_eq_u32 s54, {4*WSLOT}"); book.append("s_cselect_b32 s54, 0, s54")
            book.append("s_add_u32 s38, s38, 40960")
            if par==0:
                book.append(f"s_add_u32 s56, s56, {128-5120}")
                book.append("s_cmp_eq_u32 s39, 7"); book.append("s_cselect_b32 s22, 0, s22")
            else:
                book.append("s_add_u32 s56, s56, 5120")
                book.append("s_mov_b32 s57, s47"); book.append("s_mov_b32 s47, s48"); book.append("s_mov_b32 s48, s49"); book.append("s_mov_b32 s49, s57")
                book.append("s_add_u32 s39, s39, 1")
                book.append("s_cmp_eq_u32 s39, 8"); book.append("s_cselect_b32 s26, 0, s26")
            gaps=[[] for _ in range(55)]
            gaps[0]+=pre
            seq=[]
            ri=0
            g=1
            dpos={3:0, 9:0, 15:0, 21:0, 27:0, 33:0, 39:0, 45:0}
            dlist=[]
            if dm:
                dw,dx=dm
                dlist=[[dw[0],"s_nop 0",dw[1]] if False else [dw[0],dw[1]],[dw[2]],[dw[3]],[dw[4]],[dx[0],dx[1]],[dx[2]],[dx[3]],[dx[4]]]
            dgaps=opt.get('dgaps',[2,8,14,20,26,32,38,44])
            for gi,dl in zip(dgaps,dlist):
                if len(dl)==2:
                    gaps[gi-1].append(dl[0]); gaps[gi].append(dl[1])
                else: gaps[gi].append(dl[0])
            g=1
            for r in rd:
                while len(gaps[g])>=1: g+=1
                gaps[g].append(r);
            g=max(dgaps)+1 if dm else 1
            for b_ in book:
                while len(gaps[g])>=1 and g<54: g+=1
                gaps[g].append(b_)
            for i,(k,t,sig) in enumerate(mf):
                a=acc(sig,t); f=fidx(sig,k)
                if opt.get('mfma',True):
                    A(f"v_mfma_f32_16x16x32_bf16 v[{a}:{a+3}], a[{fw(cur,k,t)}:{fw(cur,k,t)+3}], a[{fx(cur,f)}:{fx(cur,f)+3}], v[{a}:{a+3}]")
                for x in gaps[i]: A(x)
            if opt.get('barrier',True):
                A("s_waitcnt vmcnt(16) lgkmcnt(0)"); A("s_barrier")
            else:
                A("s_waitcnt vmcnt(16) lgkmcnt(0)")
        A("s_cmp_lt_u32 s39, 10"); A(f"s_cbranch_scc1 L_loop{sh}")
        if stamps: A("s_memtime s[70:71]")
        A("s_nop 7")
        A("s_mul_i32 s44, s33, 327680"); A("s_mul_i32 s45, s34, 160"); A("s_add_u32 s44, s44, s45")
        if sh: A("s_add_u32 s44, s44, 5120")
        U=TMP; E=TMP+8; P=TMP+16
        def tile_ops(sig,t,ub,eb,pdst):
            a=acc(sig,t); S=SP+t*4; T=TP+t*4
            o=[]
            o.append(f"v_pk_fma_f32 v[{ub}:{ub+1}], v[{a}:{a+1}], v[{S}:{S+1}], v[{T}:{T+1}]")
            o.append(f"v_pk_fma_f32 v[{ub+2}:{ub+3}], v[{a+2}:{a+3}], v[{S+2}:{S+3}], v[{T+2}:{T+3}]")
            for r in range(4): o.append(f"v_exp_f32 v{eb+r}, -v{ub+r}")
            o.append(f"v_pk_fma_f32 v[{eb}:{eb+1}], v[{eb}:{eb+1}], s[52:53], s[52:53]")
            o.append(f"v_pk_fma_f32 v[{eb+2}:{eb+3}], v[{eb+2}:{eb+3}], s[52:53], s[52:53]")
            for r in range(4): o.append(f"v_rcp_f32 v{eb+r}, v{eb+r}")
            o.append("s_nop 0")
            o.append(f"v_pk_mul_f32 v[{ub}:{ub+1}], v[{ub}:{ub+1}], v[{eb}:{eb+1}]")
            o.append(f"v_pk_mul_f32 v[{ub+2}:{ub+3}], v[{ub+2}:{ub+3}], v[{eb+2}:{eb+3}]")
            o.append(f"v_cvt_pk_bf16_f32 v{pdst}, v{ub}, v{ub+1}")
            o.append(f"v_cvt_pk_bf16_f32 v{pdst+1}, v{ub+2}, v{ub+3}")
            return o
        for sp in range(2):
            for sig in (2*sp,2*sp+1):
                for tp in range(2):
                    pd=P+((sig&1)*2+tp)*4
                    for x in tile_ops(sig,2*tp,U,E,pd): A(x)
                    for x in tile_ops(sig,2*tp+1,U+4,E+4,pd+2): A(x)
                    A("s_nop 1")
                    A(f"v_permlane16_swap_b32 v{pd}, v{pd+2}"); A(f"v_permlane16_swap_b32 v{pd+1}, v{pd+3}")
                    A(f"s_add_u32 s45, s44, {sig*1280}")
                    A(f"buffer_store_dwordx4 v[{pd}:{pd+3}], v{VO}, s[28:31], s45 offen offset:{tp*64}")
            pd=P+16+sp*4
            for x in tile_ops(2*sp,4,U,E,pd): A(x)
            for x in tile_ops(2*sp+1,4,U+4,E+4,pd+2): A(x)
            A("s_nop 1")
            A(f"v_permlane16_swap_b32 v{pd}, v{pd+2}"); A(f"v_permlane16_swap_b32 v{pd+1}, v{pd+3}")
            A(f"s_add_u32 s45, s44, {2*sp*1280}")
            A(f"buffer_store_dwordx4 v[{pd}:{pd+3}], v{VO5}, s[28:31], s45 offen")
        if stamps:
            A("s_memtime s[72:73]")
            A("s_waitcnt vmcnt(0)")
            A("s_memtime s[74:75]"); A("s_memrealtime s[62:63]")
            A("s_waitcnt lgkmcnt(0)")
            A(f"s_cmp_eq_u32 s32, {opt.get('stampwave',0)}"); A("s_cbranch_scc0 L_end")
            A("s_mul_i32 s44, s2, 64"); A("s_add_u32 s18, s18, s44"); A("s_addc_u32 s19, s19, 0")
            A("v_mov_b32 v1, 0")
            for k,a in enumerate([60,62,64,66,68,70,72,74]):
                A(f"v_mov_b32 v2, s{a}"); A(f"v_mov_b32 v3, s{a+1}"); A(f"global_store_dwordx2 v1, v[2:3], s[18:19] offset:{k*8}"); A("s_nop 1")
        if sh==0: A("s_endpgm")
    A("L_end:"); A("s_endpgm")
    A('.section .rodata,"a"'); A(".p2align 6"); A(f".amdhsa_kernel {NAME}")
    A(f"  .amdhsa_next_free_vgpr {NV+160}"); A("  .amdhsa_next_free_sgpr 96"); A(f"  .amdhsa_accum_offset {NV}")
    A("  .amdhsa_group_segment_fixed_size 0"); A("  .amdhsa_kernarg_size 72"); A("  .amdhsa_user_sgpr_count 2")
    A("  .amdhsa_user_sgpr_kernarg_segment_ptr 1"); A("  .amdhsa_system_sgpr_workgroup_id_x 1"); A(".end_amdhsa_kernel")
    return "\n".join(L)+"\n"
if __name__=="__main__":
    opt={}
    for a in sys.argv[2:]:
        k,v=a.split('='); opt[k]=eval(v)
    open(sys.argv[1],"w").write(gen(opt))
```

```python
import sys
NAME="standalone__batchnorm__sampling_kernel"
HEADER=open('standalone__batchnorm__sampling.s.ref').read().split('; Override launch')[0]

XSLOT=32768; WSLOT=15424; WBASE=3*XSLOT; LDS_BYTES=WBASE+4*WSLOT
ACC=16
SP=96
TP=116
VX=136
VW=140
VXL=144
VXA=146
VWL=147
VWA=148
VO=149
VO5=150
TMP=152
NV=192
def acc(sig,t): return ACC+(sig*5+t)*4
def fx(setn,f): return setn*80+f*4
def fw(setn,k,t): return setn*80+20+(k*5+t)*4

def gen(opt):
    L=[]; A=L.append
    stamps=opt.get('stamps',False)
    A(HEADER.rstrip())
    A(f"; @launch grid=(256,1,1) block=(256,1,1) lds={LDS_BYTES}")
    A('.amdgcn_target "amdgcn-amd-amdhsa--gfx950"')
    A(".text"); A(f".globl {NAME}"); A(".p2align 8"); A(f".type {NAME},@function"); A(f"{NAME}:")
    A("s_cmp_ge_u32 s2, 256"); A("s_cbranch_scc1 L_end")
    if stamps:
        A("s_memrealtime s[60:61]"); A("s_memtime s[62:63]")
    A("s_load_dwordx4 s[4:7], s[0:1], 0")
    A("s_load_dwordx4 s[8:11], s[0:1], 16")
    A("s_load_dwordx4 s[12:15], s[0:1], 32")
    A("s_load_dwordx2 s[16:17], s[0:1], 48")
    if stamps: A("s_load_dwordx2 s[18:19], s[0:1], 64")
    A("v_lshrrev_b32 v1, 6, v0"); A("v_and_b32 v0, 63, v0")
    A("v_lshrrev_b32 v2, 4, v0")
    A("v_readfirstlane_b32 s32, v1")
    A("v_and_b32 v3, 15, v0")
    A("s_and_b32 s33, s2, 7"); A("s_lshr_b32 s34, s2, 3"); A("s_lshr_b32 s35, s34, 3"); A("s_and_b32 s34, s34, 7")
    A("s_lshl_b32 s33, s33, 2"); A("s_add_u32 s33, s33, s35")
    A("s_lshr_b32 s35, s32, 1"); A("s_and_b32 s36, s32, 1")
    A("s_mul_i32 s44, s34, 160"); A("v_lshlrev_b32 v4, 3, v2"); A("v_add_u32 v4, s44, v4")
    A("v_lshrrev_b32 v5, 3, v0")
    A("v_and_b32 v6, 7, v0"); A("v_xor_b32 v6, v6, v2")
    A("s_mov_b32 s45, 10240"); A("v_mul_lo_u32 v5, v5, s45")
    A("v_lshlrev_b32 v7, 4, v6"); A("v_xor_b32 v6, 4, v6"); A("v_lshlrev_b32 v6, 4, v6")
    A(f"v_add_u32 v{VX}, v5, v7")
    A(f"v_add_u32 v{VX+1}, v5, v6"); A(f"v_add_u32 v{VX+1}, {81920-1024}, v{VX+1}")
    A(f"v_add_u32 v{VX+2}, {2*(81920-1024)}, v{VX}")
    A(f"v_add_u32 v{VX+3}, {2*(81920-1024)}, v{VX+1}")
    A("s_mul_i32 s45, s32, 240")
    for jj in range(4):
        A(f"v_add_u32 v5, s45, v0");
        if jj: A(f"v_add_u32 v5, {60*jj}, v5")
        A("v_mul_u32_u24 v6, 0xcccd, v5"); A("v_lshrrev_b32 v6, 19, v6")
        A("v_mul_u32_u24 v7, 10, v6"); A("v_sub_u32 v7, v5, v7")
        A("v_min_u32 v6, 95, v6")
        A("v_lshrrev_b32 v8, 5, v6"); A("v_and_b32 v6, 31, v6")
        A("v_and_b32 v9, 4, v6"); A("v_lshlrev_b32 v9, 1, v9"); A("v_and_b32 v10, 8, v6"); A("v_lshrrev_b32 v10, 1, v10")
        A("v_and_b32 v6, 0x13, v6"); A("v_or3_b32 v6, v6, v9, v10")
        A("s_mov_b32 s46, 819200"); A("v_mul_lo_u32 v8, v8, s46"); A("v_mul_u32_u24 v6, 1280, v6")
        A("v_lshlrev_b32 v7, 4, v7"); A("v_add3_u32 v6, v6, v8, v7")
        A(f"v_add_u32 v{VW+jj}, s44, v6")
        if jj: A(f"v_subrev_u32 v{VW+jj}, {960*jj}, v{VW+jj}")
    A("s_mul_i32 s37, s33, 327680"); A("s_mul_i32 s45, s32, 1280"); A("s_add_u32 s37, s37, s45")
    A("s_mov_b32 s38, 0")
    if opt.get('rot',False):
        A("s_and_b32 s84, s2, 7"); A("s_mul_i32 s84, s84, 5"); A("s_lshr_b32 s84, s84, 2")
    else: A("s_mov_b32 s84, 0")
    A("s_lshl_b32 s40, s32, 12"); A("s_add_u32 s41, s40, 16384")
    A("s_mul_i32 s42, s32, 3840"); A(f"s_add_u32 s42, s42, {WBASE}")
    A("s_waitcnt lgkmcnt(0)")
    A("s_mov_b32 s20, s4"); A("s_mov_b32 s21, s5"); A("s_mov_b32 s22, 10485760"); A("s_mov_b32 s23, 0x20000")
    A("s_mov_b32 s24, s6"); A("s_mov_b32 s25, s7"); A("s_mov_b32 s26, 2457600"); A("s_mov_b32 s27, 0x20000")
    A("s_mov_b32 s28, s16"); A("s_mov_b32 s29, s17"); A("s_mov_b32 s30, 10485760"); A("s_mov_b32 s31, 0x20000")
    for pi,sp in enumerate(["s[8:9]","s[10:11]","s[12:13]","s[14:15]"]):
        for t in range(5):
            r=TMP+(pi*5+t)*2
            A(f"global_load_dwordx2 v[{r}:{r+1}], v4, {sp} offset:{t*32}")
    def dma_x(slot_expr_reg, h, soff, lst):
        lst.append(f"s_add_u32 m0, {slot_expr_reg}, s{40+h}")
        for jj in range(4):
            lst.append(f"buffer_load_dwordx4 v{VX+jj}, s[20:23], {soff} offen offset:{jj*1024} {opt.get('xf','')} lds" if jj else f"buffer_load_dwordx4 v{VX}, s[20:23], {soff} offen {opt.get('xf','')} lds")
    def dma_w(slot_reg, soff, lst):
        lst.append(f"s_add_u32 m0, {slot_reg}, s42")
        for jj in range(4):
            lst.append(f"buffer_load_dwordx4 v{VW+jj}, s[24:27], {soff} offen offset:{jj*960} {opt.get('wf','')} lds" if jj else f"buffer_load_dwordx4 v{VW}, s[24:27], {soff} offen {opt.get('wf','')} lds")
    def emit_group(lst):
        for i,x in enumerate(lst):
            A(x)
            if i==0: A("s_nop 0")
    A("s_mov_b32 s47, 0"); A(f"s_mov_b32 s48, {XSLOT}"); A(f"s_mov_b32 s49, {2*XSLOT}")
    def pw(j):
        l=[]; A(f"s_mov_b32 s50, {j*WSLOT}")
        A("s_lshl_b32 s51, s84, 1"); A(f"s_add_u32 s51, s51, {j}"); A("s_cmp_ge_u32 s51, 20"); A("s_cselect_b32 s85, 20, 0"); A("s_sub_u32 s51, s51, s85"); A("s_mul_i32 s51, s51, 40960")
        dma_w("s50","s51",l); emit_group(l)
    def px(X,h):
        l=[]; A(f"s_add_u32 s51, s84, {X}"); A("s_cmp_ge_u32 s51, 10"); A("s_cselect_b32 s85, 10, 0"); A("s_sub_u32 s51, s51, s85"); A("s_lshl_b32 s51, s51, 7")
        A("s_add_u32 s51, s51, s37")
        if h: A("s_add_u32 s51, s51, 5120")
        dma_x(["s47","s48","s49"][X],h,"s51",l); emit_group(l)
    pw(0); px(0,0); px(0,1); pw(1); px(1,0); pw(2); px(1,1); pw(3); px(2,0)
    A("v_lshrrev_b32 v5, 1, v3"); A("v_xor_b32 v5, v5, v2"); A("v_lshlrev_b32 v5, 4, v5")
    A("v_lshlrev_b32 v6, 7, v3"); A("v_add_u32 v5, v5, v6")
    A("s_lshl_b32 s45, s35, 11"); A("s_mul_i32 s46, s36, 12288"); A("s_add_u32 s45, s45, s46")
    A(f"v_add_u32 v{VXL}, s45, v5"); A(f"v_xor_b32 v{VXL+1}, 64, v{VXL}")
    A("v_lshrrev_b32 v5, 1, v2"); A("v_lshlrev_b32 v5, 4, v5"); A("v_and_b32 v6, 1, v2"); A("v_lshlrev_b32 v6, 2, v6")
    A("v_bfe_u32 v7, v0, 2, 2"); A("v_add3_u32 v5, v5, v6, v7"); A("v_mul_u32_u24 v5, 160, v5")
    A("v_and_b32 v6, 3, v0"); A("v_lshlrev_b32 v6, 3, v6"); A("v_add_u32 v5, v5, v6"); A(f"v_add_u32 v{VWL}, {WBASE}, v5")
    A("s_lshl_b32 s45, s35, 4"); A("v_add_u32 v5, s45, v3"); A("s_mov_b32 s46, 10240"); A("v_mul_lo_u32 v5, v5, s46")
    A("v_and_b32 v6, 1, v2"); A("v_lshrrev_b32 v7, 1, v2"); A("v_lshlrev_b32 v7, 4, v7")
    A("v_add_u32 v5, v5, v7")
    A("v_lshlrev_b32 v8, 5, v6"); A(f"v_add_u32 v{VO}, v5, v8")
    A("v_mul_u32_u24 v8, 1280, v6"); A(f"v_add_u32 v{VO5}, v5, v8"); A(f"v_add_u32 v{VO5}, 128, v{VO5}")
    for r in range(ACC,ACC+80): A(f"v_mov_b32 v{r}, 0")
    A("s_waitcnt vmcnt(36)")
    A("s_mov_b32 s52, 0x3fb8aa3b"); A("s_mov_b32 s53, 0x3fb8aa3b")
    for t in range(5):
        for hf in range(2):
            m=TMP+(0*5+t)*2+hf; va=TMP+(1*5+t)*2+hf; g=TMP+(2*5+t)*2+hf; b=TMP+(3*5+t)*2+hf
            for e in range(2):
                S=SP+t*4+hf*2+e; T=TP+t*4+hf*2+e
                def ex(dst,src):
                    if e==0: A(f"v_lshlrev_b32 v{dst}, 16, v{src}")
                    else: A(f"v_and_b32 v{dst}, 0xffff0000, v{src}")
                ex(5,va); A("v_add_f32 v5, 0x3727c5ac, v5"); A("v_rsq_f32 v5, v5")
                ex(6,g); ex(7,m); ex(8,b)
                A("v_mul_f32 v5, v5, v6")
                A(f"v_fma_f32 v8, -v7, v5, v8")
                A(f"v_mul_f32 v{S}, s52, v5"); A(f"v_mul_f32 v{T}, s52, v8")
    if stamps: A("s_memrealtime s[64:65]"); A("s_memtime s[66:67]")
    A("s_cmp_eq_u32 s36, 1"); A("s_cbranch_scc1 L_sh1")
    for sh in range(2):
        if sh==1: A("L_sh1:")
        def fidx(sig,k):
            f = sig+k-1 if sh==0 else sig+k
            return f if 0<=f<=4 else None
        mf=[(k,t,sig) for k in range(3) for t in range(5) for sig in range(4) if fidx(sig,k) is not None]
        def reads(setn):
            l=[]
            xs=[f"ds_read_b128 a[{fx(setn,f)}:{fx(setn,f)+3}], v{VXA} offset:{f*4096}" for f in range(5)]
            ws=[]
            for k in range(3):
                for t in range(5):
                    for hh in range(2):
                        r=fw(setn,k,t)+hh*2
                        ws.append(f"ds_read_b64_tr_b16 a[{r}:{r+1}], v{VWA} offset:{k*5120+hh*1280+t*32}")
            return xs+ws
        A("s_waitcnt vmcnt(24)"); A("s_barrier")
        if stamps: A("s_memrealtime s[68:69]"); A("s_memtime s[70:71]")
        A(f"v_add_u32 v{VXA}, s47, v{VXL}"); A(f"v_mov_b32 v{VWA}, v{VWL}")
        for i,r in enumerate(reads(0)):
            A(r)
            if i%10==9: A("s_waitcnt lgkmcnt(4)")
        if not opt.get('reads',True):
            for i,r in enumerate(reads(1)):
                A(r)
                if i%10==9: A("s_waitcnt lgkmcnt(4)")
        A("s_waitcnt vmcnt(20) lgkmcnt(0)"); A("s_barrier")
        A("s_mov_b32 s39, 0"); A(f"s_mov_b32 s54, {WSLOT}"); A("s_mov_b32 s55, 0")
        A("s_lshl_b32 s38, s84, 1"); A("s_add_u32 s38, s38, 4"); A("s_cmp_ge_u32 s38, 20"); A("s_cselect_b32 s85, 20, 0"); A("s_sub_u32 s38, s38, s85"); A("s_mul_i32 s38, s38, 40960")
        A("s_add_u32 s58, s84, 2"); A("s_cmp_ge_u32 s58, 10"); A("s_cselect_b32 s85, 10, 0"); A("s_sub_u32 s58, s58, s85"); A("s_lshl_b32 s58, s58, 7")
        A("s_add_u32 s59, s37, 5120"); A("s_add_u32 s56, s59, s58")
        A(f"L_loop{sh}:")
        for par in range(2):
            cur=par; nxt=1-par
            others=[]
            pre=[]
            if par==0: pre.append(f"v_add_u32 v{VXA}, s47, v{VXL+1}")
            else:      pre.append(f"v_add_u32 v{VXA}, s48, v{VXL}")
            pre.append(f"v_add_u32 v{VWA}, s54, v{VWL}")
            rd=reads(nxt) if opt.get('reads',True) else []
            dm=[]
            if opt.get('dma',True):
                dw=[]; dma_w("s55","s38",dw)
                dx=[]
                if par==0: dma_x("s49",1,"s56",dx)
                else:      dma_x("s47",0,"s56",dx)
                dm=[dw,dx]
            book=[]
            book.append("s_mov_b32 s55, s54")
            book.append(f"s_add_u32 s54, s54, {WSLOT}"); book.append(f"s_cmp_eq_u32 s54, {4*WSLOT}"); book.append("s_cselect_b32 s54, 0, s54")
            book.append("s_add_u32 s38, s38, 40960"); book.append("s_cmp_eq_u32 s38, 819200"); book.append("s_cselect_b32 s38, 0, s38")
            if par==0:
                book.append("s_add_u32 s58, s58, 128"); book.append("s_cmp_eq_u32 s58, 1280"); book.append("s_cselect_b32 s58, 0, s58"); book.append("s_add_u32 s56, s37, s58")
                book.append("s_cmp_eq_u32 s39, 7"); book.append("s_cselect_b32 s22, 0, s22")
            else:
                book.append("s_add_u32 s56, s59, s58")
                book.append("s_mov_b32 s57, s47"); book.append("s_mov_b32 s47, s48"); book.append("s_mov_b32 s48, s49"); book.append("s_mov_b32 s49, s57")
                book.append("s_add_u32 s39, s39, 1")
                book.append("s_cmp_eq_u32 s39, 8"); book.append("s_cselect_b32 s26, 0, s26")
            gaps=[[] for _ in range(55)]
            gaps[0]+=pre
            seq=[]
            ri=0
            g=1
            dpos={3:0, 9:0, 15:0, 21:0, 27:0, 33:0, 39:0, 45:0}
            dlist=[]
            if dm:
                dw,dx=dm
                dlist=[[dw[0],"s_nop 0",dw[1]] if False else [dw[0],dw[1]],[dw[2]],[dw[3]],[dw[4]],[dx[0],dx[1]],[dx[2]],[dx[3]],[dx[4]]]
            dgaps=opt.get('dgaps',[2,8,14,20,26,32,38,44])
            for gi,dl in zip(dgaps,dlist):
                if len(dl)==2:
                    gaps[gi-1].append(dl[0]); gaps[gi].append(dl[1])
                else: gaps[gi].append(dl[0])
            g=1
            for r in rd:
                while len(gaps[g])>=1: g+=1
                gaps[g].append(r);
            g=max(dgaps)+1 if dm else 1
            for b_ in book:
                while len(gaps[g])>=1 and g<54: g+=1
                gaps[g].append(b_)
            for i,(k,t,sig) in enumerate(mf):
                a=acc(sig,t); f=fidx(sig,k)
                if opt.get('mfma',True):
                    A(f"v_mfma_f32_16x16x32_bf16 v[{a}:{a+3}], a[{fw(cur,k,t)}:{fw(cur,k,t)+3}], a[{fx(cur,f)}:{fx(cur,f)+3}], v[{a}:{a+3}]")
                for x in gaps[i]: A(x)
            if opt.get('barrier',True):
                A("s_waitcnt vmcnt(16) lgkmcnt(0)"); A("s_barrier")
            else:
                A("s_waitcnt vmcnt(16) lgkmcnt(0)")
        A("s_cmp_lt_u32 s39, 10"); A(f"s_cbranch_scc1 L_loop{sh}")
        if stamps: A("s_memrealtime s[72:73]"); A("s_memtime s[74:75]")
        A("s_nop 7")
        A("s_mul_i32 s44, s33, 327680"); A("s_mul_i32 s45, s34, 160"); A("s_add_u32 s44, s44, s45")
        if sh: A("s_add_u32 s44, s44, 5120")
        U=TMP; E=TMP+8; P=TMP+16
        def tile_ops(sig,t,ub,eb,pdst):
            a=acc(sig,t); S=SP+t*4; T=TP+t*4
            o=[]
            o.append(f"v_pk_fma_f32 v[{ub}:{ub+1}], v[{a}:{a+1}], v[{S}:{S+1}], v[{T}:{T+1}]")
            o.append(f"v_pk_fma_f32 v[{ub+2}:{ub+3}], v[{a+2}:{a+3}], v[{S+2}:{S+3}], v[{T+2}:{T+3}]")
            for r in range(4): o.append(f"v_exp_f32 v{eb+r}, -v{ub+r}")
            o.append(f"v_pk_fma_f32 v[{eb}:{eb+1}], v[{eb}:{eb+1}], s[52:53], s[52:53]")
            o.append(f"v_pk_fma_f32 v[{eb+2}:{eb+3}], v[{eb+2}:{eb+3}], s[52:53], s[52:53]")
            for r in range(4): o.append(f"v_rcp_f32 v{eb+r}, v{eb+r}")
            o.append("s_nop 0")
            o.append(f"v_pk_mul_f32 v[{ub}:{ub+1}], v[{ub}:{ub+1}], v[{eb}:{eb+1}]")
            o.append(f"v_pk_mul_f32 v[{ub+2}:{ub+3}], v[{ub+2}:{ub+3}], v[{eb+2}:{eb+3}]")
            o.append(f"v_cvt_pk_bf16_f32 v{pdst}, v{ub}, v{ub+1}")
            o.append(f"v_cvt_pk_bf16_f32 v{pdst+1}, v{ub+2}, v{ub+3}")
            return o
        for sp in range(2):
            for sig in (2*sp,2*sp+1):
                for tp in range(2):
                    pd=P+((sig&1)*2+tp)*4
                    for x in tile_ops(sig,2*tp,U,E,pd): A(x)
                    for x in tile_ops(sig,2*tp+1,U+4,E+4,pd+2): A(x)
                    A("s_nop 1")
                    A(f"v_permlane16_swap_b32 v{pd}, v{pd+2}"); A(f"v_permlane16_swap_b32 v{pd+1}, v{pd+3}")
                    A(f"s_add_u32 s45, s44, {sig*1280}")
                    A(f"buffer_store_dwordx4 v[{pd}:{pd+3}], v{VO}, s[28:31], s45 offen offset:{tp*64} {opt.get('sf','')}")
            pd=P+16+sp*4
            for x in tile_ops(2*sp,4,U,E,pd): A(x)
            for x in tile_ops(2*sp+1,4,U+4,E+4,pd+2): A(x)
            A("s_nop 1")
            A(f"v_permlane16_swap_b32 v{pd}, v{pd+2}"); A(f"v_permlane16_swap_b32 v{pd+1}, v{pd+3}")
            A(f"s_add_u32 s45, s44, {2*sp*1280}")
            A(f"buffer_store_dwordx4 v[{pd}:{pd+3}], v{VO5}, s[28:31], s45 offen {opt.get('sf','')}")
        if stamps:
            A("s_memrealtime s[76:77]"); A("s_memtime s[78:79]")
            A("s_waitcnt vmcnt(0)")
            A("s_memrealtime s[80:81]"); A("s_memtime s[82:83]")
            A("s_waitcnt lgkmcnt(0)")
            A(f"s_cmp_eq_u32 s32, {opt.get('stampwave',0)}"); A("s_cbranch_scc0 L_end")
            A("s_mul_i32 s44, s2, 96"); A("s_add_u32 s18, s18, s44"); A("s_addc_u32 s19, s19, 0")
            A("v_mov_b32 v1, 0")
            for k,a in enumerate(range(60,84,2)):
                A(f"v_mov_b32 v2, s{a}"); A(f"v_mov_b32 v3, s{a+1}"); A(f"global_store_dwordx2 v1, v[2:3], s[18:19] offset:{k*8}"); A("s_nop 1")
        if sh==0: A("s_endpgm")
    A("L_end:"); A("s_endpgm")
    A('.section .rodata,"a"'); A(".p2align 6"); A(f".amdhsa_kernel {NAME}")
    A(f"  .amdhsa_next_free_vgpr {NV+160}"); A("  .amdhsa_next_free_sgpr 96"); A(f"  .amdhsa_accum_offset {NV}")
    A("  .amdhsa_group_segment_fixed_size 0"); A("  .amdhsa_kernarg_size 72"); A("  .amdhsa_user_sgpr_count 2")
    A("  .amdhsa_user_sgpr_kernarg_segment_ptr 1"); A("  .amdhsa_system_sgpr_workgroup_id_x 1"); A(".end_amdhsa_kernel")
    return "\n".join(L)+"\n"
if __name__=="__main__":
    opt={}
    for a in sys.argv[2:]:
        k,v=a.split('='); opt[k]=eval(v)
    open(sys.argv[1],"w").write(gen(opt))
```

```python
import sys
NAME="standalone__batchnorm__sampling_kernel"
HEADER=open('standalone__batchnorm__sampling.s.ref').read().split('; Override launch')[0]

XSLOT=32768; WSLOT=15424; WBASE=3*XSLOT; LDS_BYTES=WBASE+4*WSLOT
ACC=16
SP=96
TP=116
VX=136
VW=140
VXL=144
VXA=146
VWL=147
VWA=148
VO=149
VO5=150
TMP=152
NV=192
def acc(sig,t): return ACC+(sig*5+t)*4
def fx(setn,f): return setn*80+f*4
def fw(setn,k,t): return setn*80+20+(k*5+t)*4

def gen(opt):
    L=[]; A=L.append
    stamps=opt.get('stamps',False)
    A(HEADER.rstrip())
    A(f"; @launch grid=(256,1,1) block=(256,1,1) lds={LDS_BYTES}")
    A('.amdgcn_target "amdgcn-amd-amdhsa--gfx950"')
    A(".text"); A(f".globl {NAME}"); A(".p2align 8"); A(f".type {NAME},@function"); A(f"{NAME}:")
    A("s_cmp_ge_u32 s2, 256"); A("s_cbranch_scc1 L_end")
    if stamps:
        A("s_memrealtime s[60:61]"); A("s_memtime s[62:63]")
    A("s_load_dwordx4 s[4:7], s[0:1], 0")
    A("s_load_dwordx4 s[8:11], s[0:1], 16")
    A("s_load_dwordx4 s[12:15], s[0:1], 32")
    A("s_load_dwordx2 s[16:17], s[0:1], 48")
    if stamps: A(f"s_load_dwordx2 s[18:19], s[0:1], {56 if stamps=='dbg' else 64}")
    A("v_lshrrev_b32 v1, 6, v0"); A("v_and_b32 v0, 63, v0")
    A("v_lshrrev_b32 v2, 4, v0")
    A("v_readfirstlane_b32 s32, v1")
    A("v_and_b32 v3, 15, v0")
    A("s_and_b32 s33, s2, 7"); A("s_lshr_b32 s34, s2, 3"); A("s_lshr_b32 s35, s34, 3"); A("s_and_b32 s34, s34, 7")
    A("s_lshl_b32 s33, s33, 2"); A("s_add_u32 s33, s33, s35")
    A("s_lshr_b32 s35, s32, 1"); A("s_and_b32 s36, s32, 1")
    A("s_mul_i32 s44, s34, 160"); A("v_lshlrev_b32 v4, 3, v2"); A("v_add_u32 v4, s44, v4")
    A("v_lshrrev_b32 v5, 3, v0")
    A("v_and_b32 v6, 7, v0"); A("v_xor_b32 v6, v6, v2")
    A("s_mov_b32 s45, 10240"); A("v_mul_lo_u32 v5, v5, s45")
    A("v_lshlrev_b32 v7, 4, v6"); A("v_xor_b32 v6, 4, v6"); A("v_lshlrev_b32 v6, 4, v6")
    A(f"v_add_u32 v{VX}, v5, v7")
    A(f"v_add_u32 v{VX+1}, v5, v6"); A(f"v_add_u32 v{VX+1}, {81920-1024}, v{VX+1}")
    A(f"v_add_u32 v{VX+2}, {2*(81920-1024)}, v{VX}")
    A(f"v_add_u32 v{VX+3}, {2*(81920-1024)}, v{VX+1}")
    A("s_mul_i32 s45, s32, 240")
    for jj in range(4):
        A(f"v_add_u32 v5, s45, v0");
        if jj: A(f"v_add_u32 v5, {60*jj}, v5")
        A("v_mul_u32_u24 v6, 0xcccd, v5"); A("v_lshrrev_b32 v6, 19, v6")
        A("v_mul_u32_u24 v7, 10, v6"); A("v_sub_u32 v7, v5, v7")
        A("v_min_u32 v6, 95, v6")
        A("v_lshrrev_b32 v8, 5, v6"); A("v_and_b32 v6, 31, v6")
        A("v_and_b32 v9, 4, v6"); A("v_lshlrev_b32 v9, 1, v9"); A("v_and_b32 v10, 8, v6"); A("v_lshrrev_b32 v10, 1, v10")
        A("v_and_b32 v6, 0x13, v6"); A("v_or3_b32 v6, v6, v9, v10")
        A("s_mov_b32 s46, 819200"); A("v_mul_lo_u32 v8, v8, s46"); A("v_mul_u32_u24 v6, 1280, v6")
        A("v_lshlrev_b32 v7, 4, v7"); A("v_add3_u32 v6, v6, v8, v7")
        A(f"v_add_u32 v{VW+jj}, s44, v6")
        if jj: A(f"v_subrev_u32 v{VW+jj}, {960*jj}, v{VW+jj}")
    A("s_mul_i32 s37, s33, 327680"); A("s_mul_i32 s45, s32, 1280"); A("s_add_u32 s37, s37, s45")
    A("s_mov_b32 s38, 0")
    if opt.get('rot',False):
        A("s_and_b32 s84, s2, 7"); A("s_mul_i32 s84, s84, 5"); A("s_lshr_b32 s84, s84, 2")
    else: A("s_mov_b32 s84, 0")
    A("s_lshl_b32 s40, s32, 12"); A("s_add_u32 s41, s40, 16384")
    A("s_mul_i32 s42, s32, 3840"); A(f"s_add_u32 s42, s42, {WBASE}")
    A("s_waitcnt lgkmcnt(0)")
    A("s_mov_b32 s20, s4"); A("s_mov_b32 s21, s5"); A("s_mov_b32 s22, 10485760"); A("s_mov_b32 s23, 0x20000")
    A("s_mov_b32 s24, s6"); A("s_mov_b32 s25, s7"); A("s_mov_b32 s26, 2457600"); A("s_mov_b32 s27, 0x20000")
    A("s_mov_b32 s28, s16"); A("s_mov_b32 s29, s17"); A("s_mov_b32 s30, 10485760"); A("s_mov_b32 s31, 0x20000")
    for pi,sp in enumerate(["s[8:9]","s[10:11]","s[12:13]","s[14:15]"]):
        for t in range(5):
            r=TMP+(pi*5+t)*2
            A(f"global_load_dwordx2 v[{r}:{r+1}], v4, {sp} offset:{t*32}")
    def dma_x(slot_expr_reg, h, soff, lst):
        lst.append(f"s_add_u32 m0, {slot_expr_reg}, s{40+h}")
        for jj in range(4):
            lst.append(f"buffer_load_dwordx4 v{VX+jj}, s[20:23], {soff} offen offset:{jj*1024} {opt.get('xf','')} lds" if jj else f"buffer_load_dwordx4 v{VX}, s[20:23], {soff} offen {opt.get('xf','')} lds")
    def dma_w(slot_reg, soff, lst):
        lst.append(f"s_add_u32 m0, {slot_reg}, s42")
        for jj in range(4):
            lst.append(f"buffer_load_dwordx4 v{VW+jj}, s[24:27], {soff} offen offset:{jj*960} {opt.get('wf','')} lds" if jj else f"buffer_load_dwordx4 v{VW}, s[24:27], {soff} offen {opt.get('wf','')} lds")
    def emit_group(lst):
        for i,x in enumerate(lst):
            A(x)
            if i==0: A("s_nop 0")
    A("s_mov_b32 s47, 0"); A(f"s_mov_b32 s48, {XSLOT}"); A(f"s_mov_b32 s49, {2*XSLOT}")
    def pw(j):
        l=[]; A(f"s_mov_b32 s50, {j*WSLOT}")
        A("s_lshl_b32 s51, s84, 1"); A(f"s_add_u32 s51, s51, {j}"); A("s_cmp_ge_u32 s51, 20"); A("s_cselect_b32 s85, 20, 0"); A("s_sub_u32 s51, s51, s85"); A("s_mul_i32 s51, s51, 40960")
        dma_w("s50","s51",l); emit_group(l)
    def px(X,h):
        l=[]; A(f"s_add_u32 s51, s84, {X}"); A("s_cmp_ge_u32 s51, 10"); A("s_cselect_b32 s85, 10, 0"); A("s_sub_u32 s51, s51, s85"); A("s_lshl_b32 s51, s51, 7")
        A("s_add_u32 s51, s51, s37")
        if h: A("s_add_u32 s51, s51, 5120")
        dma_x(["s47","s48","s49"][X],h,"s51",l); emit_group(l)
    pw(0); px(0,0); px(0,1); pw(1); px(1,0); pw(2); px(1,1); pw(3); px(2,0)
    A("v_lshrrev_b32 v5, 1, v3"); A("v_xor_b32 v5, v5, v2"); A("v_lshlrev_b32 v5, 4, v5")
    A("v_lshlrev_b32 v6, 7, v3"); A("v_add_u32 v5, v5, v6")
    A("s_lshl_b32 s45, s35, 11"); A("s_mul_i32 s46, s36, 12288"); A("s_add_u32 s45, s45, s46")
    A(f"v_add_u32 v{VXL}, s45, v5"); A(f"v_xor_b32 v{VXL+1}, 64, v{VXL}")
    A("v_lshrrev_b32 v5, 1, v2"); A("v_lshlrev_b32 v5, 4, v5"); A("v_and_b32 v6, 1, v2"); A("v_lshlrev_b32 v6, 2, v6")
    A("v_bfe_u32 v7, v0, 2, 2"); A("v_add3_u32 v5, v5, v6, v7"); A("v_mul_u32_u24 v5, 160, v5")
    A("v_and_b32 v6, 3, v0"); A("v_lshlrev_b32 v6, 3, v6"); A("v_add_u32 v5, v5, v6"); A(f"v_add_u32 v{VWL}, {WBASE}, v5")
    A("s_lshl_b32 s45, s35, 4"); A("v_add_u32 v5, s45, v3"); A("s_mov_b32 s46, 10240"); A("v_mul_lo_u32 v5, v5, s46")
    A("v_and_b32 v6, 1, v2"); A("v_lshrrev_b32 v7, 1, v2"); A("v_lshlrev_b32 v7, 4, v7")
    A("v_add_u32 v5, v5, v7")
    A("v_lshlrev_b32 v8, 5, v6"); A(f"v_add_u32 v{VO}, v5, v8")
    A("v_mul_u32_u24 v8, 1280, v6"); A(f"v_add_u32 v{VO5}, v5, v8"); A(f"v_add_u32 v{VO5}, 128, v{VO5}")
    for r in range(ACC,ACC+80): A(f"v_mov_b32 v{r}, 0")
    A("s_waitcnt vmcnt(36)")
    A("s_mov_b32 s52, 0x3fb8aa3b"); A("s_mov_b32 s53, 0x3fb8aa3b")
    for t in range(5):
        for hf in range(2):
            m=TMP+(0*5+t)*2+hf; va=TMP+(1*5+t)*2+hf; g=TMP+(2*5+t)*2+hf; b=TMP+(3*5+t)*2+hf
            for e in range(2):
                S=SP+t*4+hf*2+e; T=TP+t*4+hf*2+e
                def ex(dst,src):
                    if e==0: A(f"v_lshlrev_b32 v{dst}, 16, v{src}")
                    else: A(f"v_and_b32 v{dst}, 0xffff0000, v{src}")
                ex(5,va); A("v_add_f32 v5, 0x3727c5ac, v5"); A("v_rsq_f32 v5, v5")
                ex(6,g); ex(7,m); ex(8,b)
                A("v_mul_f32 v5, v5, v6")
                A(f"v_fma_f32 v8, -v7, v5, v8")
                A(f"v_mul_f32 v{S}, s52, v5"); A(f"v_mul_f32 v{T}, s52, v8")
    if stamps: A("s_memrealtime s[64:65]"); A("s_memtime s[66:67]")
    A("s_cmp_eq_u32 s36, 1"); A("s_cbranch_scc1 L_sh1")
    for sh in range(2):
        if sh==1: A("L_sh1:")
        def fidx(sig,k):
            f = sig+k-1 if sh==0 else sig+k
            return f if 0<=f<=4 else None
        mf=[(k,t,sig) for k in range(3) for t in range(5) for sig in range(4) if fidx(sig,k) is not None]
        def reads(setn):
            l=[]
            xs=[f"ds_read_b128 a[{fx(setn,f)}:{fx(setn,f)+3}], v{VXA} offset:{f*4096}" for f in range(5)]
            ws=[]
            for k in range(3):
                for t in range(5):
                    for hh in range(2):
                        r=fw(setn,k,t)+hh*2
                        ws.append(f"ds_read_b64_tr_b16 a[{r}:{r+1}], v{VWA} offset:{k*5120+hh*1280+t*32}")
            return xs+ws
        A("s_waitcnt vmcnt(24)"); A("s_barrier")
        if stamps: A("s_memrealtime s[68:69]"); A("s_memtime s[70:71]")
        A(f"v_add_u32 v{VXA}, s47, v{VXL}"); A(f"v_mov_b32 v{VWA}, v{VWL}")
        for i,r in enumerate(reads(0)):
            A(r)
            if i%10==9: A("s_waitcnt lgkmcnt(4)")
        if not opt.get('reads',True):
            for i,r in enumerate(reads(1)):
                A(r)
                if i%10==9: A("s_waitcnt lgkmcnt(4)")
        A("s_waitcnt vmcnt(20) lgkmcnt(0)"); A("s_barrier")
        A("s_mov_b32 s39, 0"); A(f"s_mov_b32 s54, {WSLOT}"); A("s_mov_b32 s55, 0")
        A("s_lshl_b32 s38, s84, 1"); A("s_add_u32 s38, s38, 4"); A("s_cmp_ge_u32 s38, 20"); A("s_cselect_b32 s85, 20, 0"); A("s_sub_u32 s38, s38, s85"); A("s_mul_i32 s38, s38, 40960")
        A("s_add_u32 s58, s84, 2"); A("s_cmp_ge_u32 s58, 10"); A("s_cselect_b32 s85, 10, 0"); A("s_sub_u32 s58, s58, s85"); A("s_lshl_b32 s58, s58, 7")
        A("s_add_u32 s59, s37, 5120"); A("s_add_u32 s56, s59, s58")
        A(f"L_loop{sh}:")
        for par in range(2):
            cur=par; nxt=1-par
            others=[]
            pre=[]
            if par==0: pre.append(f"v_add_u32 v{VXA}, s47, v{VXL+1}")
            else:      pre.append(f"v_add_u32 v{VXA}, s48, v{VXL}")
            pre.append(f"v_add_u32 v{VWA}, s54, v{VWL}")
            rd=reads(nxt) if opt.get('reads',True) else []
            dm=[]
            if opt.get('dma',True):
                dw=[]; dma_w("s55","s38",dw)
                dx=[]
                if par==0: dma_x("s49",1,"s56",dx)
                else:      dma_x("s47",0,"s56",dx)
                dm=[dw,dx]
            book=[]
            book.append("s_mov_b32 s55, s54")
            book.append(f"s_add_u32 s54, s54, {WSLOT}"); book.append(f"s_cmp_eq_u32 s54, {4*WSLOT}"); book.append("s_cselect_b32 s54, 0, s54")
            book.append("s_add_u32 s38, s38, 40960"); book.append("s_cmp_eq_u32 s38, 819200"); book.append("s_cselect_b32 s38, 0, s38")
            if par==0:
                book.append("s_add_u32 s58, s58, 128"); book.append("s_cmp_eq_u32 s58, 1280"); book.append("s_cselect_b32 s58, 0, s58"); book.append("s_add_u32 s56, s37, s58")
                book.append("s_cmp_eq_u32 s39, 7"); book.append("s_cselect_b32 s22, 0, s22")
            else:
                book.append("s_add_u32 s56, s59, s58")
                book.append("s_mov_b32 s57, s47"); book.append("s_mov_b32 s47, s48"); book.append("s_mov_b32 s48, s49"); book.append("s_mov_b32 s49, s57")
                book.append("s_add_u32 s39, s39, 1")
                book.append("s_cmp_eq_u32 s39, 8"); book.append("s_cselect_b32 s26, 0, s26")
            gaps=[[] for _ in range(55)]
            gaps[0]+=pre
            seq=[]
            ri=0
            g=1
            dpos={3:0, 9:0, 15:0, 21:0, 27:0, 33:0, 39:0, 45:0}
            dlist=[]
            if dm:
                dw,dx=dm
                dlist=[[dw[0],"s_nop 0",dw[1]] if False else [dw[0],dw[1]],[dw[2]],[dw[3]],[dw[4]],[dx[0],dx[1]],[dx[2]],[dx[3]],[dx[4]]]
            dgaps=opt.get('dgaps',[2,8,14,20,26,32,38,44])
            for gi,dl in zip(dgaps,dlist):
                if len(dl)==2:
                    gaps[gi-1].append(dl[0]); gaps[gi].append(dl[1])
                else: gaps[gi].append(dl[0])
            g=1
            for r in rd:
                while len(gaps[g])>=1: g+=1
                gaps[g].append(r);
            g=max(dgaps)+1 if dm else 1
            for b_ in book:
                while len(gaps[g])>=1 and g<54: g+=1
                gaps[g].append(b_)
            for i,(k,t,sig) in enumerate(mf):
                a=acc(sig,t); f=fidx(sig,k)
                if opt.get('mfma',True):
                    A(f"v_mfma_f32_16x16x32_bf16 v[{a}:{a+3}], a[{fw(cur,k,t)}:{fw(cur,k,t)+3}], a[{fx(cur,f)}:{fx(cur,f)+3}], v[{a}:{a+3}]")
                for x in gaps[i]: A(x)
            if opt.get('barrier',True):
                A("s_waitcnt vmcnt(16) lgkmcnt(0)"); A("s_barrier")
            else:
                A("s_waitcnt vmcnt(16) lgkmcnt(0)")
        A("s_cmp_lt_u32 s39, 10"); A(f"s_cbranch_scc1 L_loop{sh}")
        if stamps: A("s_memrealtime s[72:73]"); A("s_memtime s[74:75]")
        A("s_nop 7")
        A("s_mul_i32 s44, s33, 327680"); A("s_mul_i32 s45, s34, 160"); A("s_add_u32 s44, s44, s45")
        if sh: A("s_add_u32 s44, s44, 5120")
        U=TMP; E=TMP+8; P=TMP+16
        def tile_ops(sig,t,ub,eb,pdst):
            a=acc(sig,t); S=SP+t*4; T=TP+t*4
            o=[]
            o.append(f"v_pk_fma_f32 v[{ub}:{ub+1}], v[{a}:{a+1}], v[{S}:{S+1}], v[{T}:{T+1}]")
            o.append(f"v_pk_fma_f32 v[{ub+2}:{ub+3}], v[{a+2}:{a+3}], v[{S+2}:{S+3}], v[{T+2}:{T+3}]")
            for r in range(4): o.append(f"v_exp_f32 v{eb+r}, -v{ub+r}")
            o.append(f"v_pk_fma_f32 v[{eb}:{eb+1}], v[{eb}:{eb+1}], s[52:53], s[52:53]")
            o.append(f"v_pk_fma_f32 v[{eb+2}:{eb+3}], v[{eb+2}:{eb+3}], s[52:53], s[52:53]")
            for r in range(4): o.append(f"v_rcp_f32 v{eb+r}, v{eb+r}")
            o.append("s_nop 0")
            o.append(f"v_pk_mul_f32 v[{ub}:{ub+1}], v[{ub}:{ub+1}], v[{eb}:{eb+1}]")
            o.append(f"v_pk_mul_f32 v[{ub+2}:{ub+3}], v[{ub+2}:{ub+3}], v[{eb+2}:{eb+3}]")
            o.append(f"v_cvt_pk_bf16_f32 v{pdst}, v{ub}, v{ub+1}")
            o.append(f"v_cvt_pk_bf16_f32 v{pdst+1}, v{ub+2}, v{ub+3}")
            return o
        for sp in range(2):
            for sig in (2*sp,2*sp+1):
                for tp in range(2):
                    pd=P+((sig&1)*2+tp)*4
                    for x in tile_ops(sig,2*tp,U,E,pd): A(x)
                    for x in tile_ops(sig,2*tp+1,U+4,E+4,pd+2): A(x)
                    A("s_nop 1")
                    A(f"v_permlane16_swap_b32 v{pd}, v{pd+2}"); A(f"v_permlane16_swap_b32 v{pd+1}, v{pd+3}")
                    A(f"s_add_u32 s45, s44, {sig*1280}")
                    A(f"buffer_store_dwordx4 v[{pd}:{pd+3}], v{VO}, s[28:31], s45 offen offset:{tp*64} {opt.get('sf','')}")
            pd=P+16+sp*4
            for x in tile_ops(2*sp,4,U,E,pd): A(x)
            for x in tile_ops(2*sp+1,4,U+4,E+4,pd+2): A(x)
            A("s_nop 1")
            A(f"v_permlane16_swap_b32 v{pd}, v{pd+2}"); A(f"v_permlane16_swap_b32 v{pd+1}, v{pd+3}")
            A(f"s_add_u32 s45, s44, {2*sp*1280}")
            A(f"buffer_store_dwordx4 v[{pd}:{pd+3}], v{VO5}, s[28:31], s45 offen {opt.get('sf','')}")
        if stamps:
            A("s_memrealtime s[76:77]"); A("s_memtime s[78:79]")
            A("s_waitcnt vmcnt(0)")
            A("s_memrealtime s[80:81]"); A("s_memtime s[82:83]")
            A("s_waitcnt lgkmcnt(0)")
            A(f"s_cmp_eq_u32 s32, {opt.get('stampwave',0)}"); A("s_cbranch_scc0 L_end")
            A("v_mov_b32 v1, 0")
            if stamps=='dbg':
                A("s_mov_b64 exec, 1")
                A("v_mov_b32 v2, s80"); A("global_atomic_umax v1, v2, s[18:19]")
                A("s_not_b32 s44, s60"); A("v_mov_b32 v3, s44"); A("global_atomic_umax v1, v3, s[18:19] offset:4")
                A(f"s_cmp_eq_u32 s2, {opt.get('dbgwg',77)}"); A("s_cbranch_scc0 L_end")
                for k in range(5):
                    a=60+4*k
                    A(f"s_sub_u32 s44, s{a+4}, s{a}"); A(f"s_sub_u32 s45, s{a+6}, s{a+2}")
                    A("v_mov_b32 v2, s44"); A("v_mov_b32 v3, s45"); A(f"global_store_dwordx2 v1, v[2:3], s[18:19] offset:{8+k*8}"); A("s_nop 1")
            else:
                A("s_mul_i32 s44, s2, 96"); A("s_add_u32 s18, s18, s44"); A("s_addc_u32 s19, s19, 0")
                for k,a in enumerate(range(60,84,2)):
                    A(f"v_mov_b32 v2, s{a}"); A(f"v_mov_b32 v3, s{a+1}"); A(f"global_store_dwordx2 v1, v[2:3], s[18:19] offset:{k*8}"); A("s_nop 1")
        if sh==0: A("s_endpgm")
    A("L_end:"); A("s_endpgm")
    A('.section .rodata,"a"'); A(".p2align 6"); A(f".amdhsa_kernel {NAME}")
    A(f"  .amdhsa_next_free_vgpr {NV+160}"); A("  .amdhsa_next_free_sgpr 96"); A(f"  .amdhsa_accum_offset {NV}")
    A("  .amdhsa_group_segment_fixed_size 0"); A("  .amdhsa_kernarg_size 72"); A("  .amdhsa_user_sgpr_count 2")
    A("  .amdhsa_user_sgpr_kernarg_segment_ptr 1"); A("  .amdhsa_system_sgpr_workgroup_id_x 1"); A(".end_amdhsa_kernel")
    return "\n".join(L)+"\n"
if __name__=="__main__":
    opt={}
    for a in sys.argv[2:]:
        k,v=a.split('='); opt[k]=eval(v)
    open(sys.argv[1],"w").write(gen(opt))
```

```python
import sys
NAME="standalone__batchnorm__sampling_kernel"
HEADER=open('standalone__batchnorm__sampling.s.ref').read().split('; Override launch')[0]

WSLOT=16384; XBASE=65536; XSLOT=32768; LDS_BYTES=163840; STB=15424
VXL=2
VXA=4
VWE=5
VWO=6
VO=7; VO5=8; VST=9
ACC=12
WV=92
NV=128; NA=100
def acc(ti,s):
    return ACC+((ti*8+s)*4)
def fx(setn,f): return f"a[{setn*68+f*4}:{setn*68+f*4+3}]"
def fwreg(setn,k,ti):
    idx=(ti*3+k)*4
    return ('a',32+idx) if setn==0 else ('v',WV+idx)
def fw(setn,k,ti):
    c,r=fwreg(setn,k,ti); return f"{c}[{r}:{r+3}]"

def gen(opt):
    L=[]; A=L.append
    stamps=opt.get('stamps',False)
    xf=opt.get('xf',''); wf=opt.get('wf',''); sf=opt.get('sf','')
    def stamp(k):
        if stamps: A(f"s_memrealtime s[{60+4*k}:{61+4*k}]"); A(f"s_memtime s[{62+4*k}:{63+4*k}]")
    A(HEADER.rstrip())
    A(f"; @launch grid=(256,1,1) block=(512,1,1) lds={LDS_BYTES}")
    A('.amdgcn_target "amdgcn-amd-amdhsa--gfx950"')
    A(".text"); A(f".globl {NAME}"); A(".p2align 8"); A(f".type {NAME},@function"); A(f"{NAME}:")
    A("s_cmp_ge_u32 s2, 256"); A("s_cbranch_scc1 L_end")
    stamp(0)
    A("s_load_dwordx4 s[4:7], s[0:1], 0")
    A("v_lshrrev_b32 v1, 6, v0"); A("v_and_b32 v0, 63, v0")
    A("s_and_b32 s33, s2, 7"); A("v_readfirstlane_b32 s32, v1")
    A("s_lshr_b32 s34, s2, 3"); A("s_lshr_b32 s35, s34, 3"); A("s_and_b32 s34, s34, 7")
    if opt.get('rot',True):
        A("s_mul_i32 s84, s33, 5"); A("s_lshr_b32 s84, s84, 2")
    else: A("s_mov_b32 s84, 0")
    A("s_lshl_b32 s33, s33, 2"); A("s_add_u32 s33, s33, s35")
    A("s_cmp_lt_u32 s32, 4"); A("s_cbranch_scc1 L_compute")
    A("s_sub_u32 s32, s32, 4")
    A("v_lshrrev_b32 v2, 4, v0")
    A("v_lshrrev_b32 v5, 3, v0")
    A("v_and_b32 v6, 7, v0"); A("v_xor_b32 v6, v6, v2")
    A("v_mul_u32_u24 v5, 10240, v5")
    A("v_lshlrev_b32 v7, 4, v6"); A("v_xor_b32 v6, 4, v6"); A("v_lshlrev_b32 v6, 4, v6")
    VX=8; VW=12
    A(f"v_add_u32 v{VX}, v5, v7")
    A(f"v_add_u32 v{VX+1}, v5, v6"); A(f"v_add_u32 v{VX+1}, {81920-1024}, v{VX+1}")
    A(f"v_add_u32 v{VX+2}, {2*(81920-1024)}, v{VX}")
    A(f"v_add_u32 v{VX+3}, {2*(81920-1024)}, v{VX+1}")
    A("s_mul_i32 s37, s33, 327680"); A("s_mul_i32 s45, s32, 1280"); A("s_add_u32 s37, s37, s45")
    A("s_add_u32 s59, s37, 5120")
    A("s_lshl_b32 s40, s32, 12"); A(f"s_add_u32 s40, s40, {XBASE}"); A("s_add_u32 s41, s40, 16384")
    A("s_mul_i32 s42, s32, 3840")
    A("s_mul_i32 s44, s34, 160"); A("s_mul_i32 s45, s32, 240")
    for jj in range(4):
        A(f"v_add_u32 v5, s45, v0")
        if jj: A(f"v_add_u32 v5, {60*jj}, v5")
        A("v_mul_u32_u24 v6, 0xcccd, v5"); A("v_lshrrev_b32 v6, 19, v6")
        A("v_mul_u32_u24 v7, 10, v6"); A("v_sub_u32 v7, v5, v7")
        A("v_min_u32 v6, 95, v6")
        A("v_lshrrev_b32 v16, 5, v6"); A("v_and_b32 v6, 31, v6")
        A("v_and_b32 v17, 4, v6"); A("v_lshlrev_b32 v17, 1, v17"); A("v_and_b32 v18, 8, v6"); A("v_lshrrev_b32 v18, 1, v18")
        A("v_and_b32 v6, 0x13, v6"); A("v_or3_b32 v6, v6, v17, v18")
        A("v_mul_u32_u24 v16, 819200, v16"); A("v_mul_u32_u24 v6, 1280, v6")
        A("v_lshlrev_b32 v7, 4, v7"); A("v_add3_u32 v6, v6, v16, v7")
        A(f"v_add_u32 v{VW+jj}, s44, v6")
        if jj: A(f"v_subrev_u32 v{VW+jj}, {960*jj}, v{VW+jj}")
    A("s_lshl_b32 s58, s84, 7"); A("s_mul_i32 s38, s84, 81920")
    def adv_x(): A("s_add_u32 s58, s58, 128"); A("s_cmp_eq_u32 s58, 1280"); A("s_cselect_b32 s58, 0, s58")
    def adv_w(): A("s_add_u32 s38, s38, 40960"); A("s_cmp_eq_u32 s38, 819200"); A("s_cselect_b32 s38, 0, s38")
    def dma_x(slotoff, h):
        if isinstance(slotoff,int): A(f"s_add_u32 m0, s{40+h}, {slotoff}")
        else: A(f"s_add_u32 m0, s{40+h}, {slotoff}")
        A(f"s_add_u32 s56, s{59 if h else 37}, s58")
        for jj in range(4):
            A(f"buffer_load_dwordx4 v{VX+jj}, s[20:23], s56 offen offset:{jj*1024} {xf} lds")
    def dma_w(slotoff):
        A(f"s_add_u32 m0, s42, {slotoff}")
        A("s_nop 0")
        for jj in range(4):
            A(f"buffer_load_dwordx4 v{VW+jj}, s[24:27], s38 offen offset:{jj*960} {wf} lds")
        adv_w()
    A("s_waitcnt lgkmcnt(0)")
    A("s_mov_b32 s20, s4"); A("s_mov_b32 s21, s5"); A("s_mov_b32 s22, 10485760"); A("s_mov_b32 s23, 0x20000")
    A("s_mov_b32 s24, s6"); A("s_mov_b32 s25, s7"); A("s_mov_b32 s26, 2457600"); A("s_mov_b32 s27, 0x20000")
    dma_x(0,0); dma_x(0,1); adv_x()
    dma_w(0); dma_w(WSLOT)
    dma_x(XSLOT,0)
    dma_w(2*WSLOT)
    A("s_waitcnt vmcnt(12)"); A("s_barrier")
    dma_x(XSLOT,1); adv_x()
    dma_w(3*WSLOT)
    A("s_waitcnt vmcnt(16)"); A("s_barrier")
    dma_x(2*XSLOT,0)
    A(f"s_mov_b32 s47, {2*XSLOT}"); A("s_mov_b32 s55, 0"); A("s_mov_b32 s39, 0")
    A("L_ldloop:")
    dma_w("s55"); A(f"s_add_u32 s55, s55, {WSLOT}")
    dma_x("s47",1); adv_x()
    A(f"s_add_u32 s47, s47, {XSLOT}"); A(f"s_cmp_eq_u32 s47, {3*XSLOT}"); A("s_cselect_b32 s47, 0, s47")
    A("s_waitcnt vmcnt(16)"); A("s_barrier")
    dma_w("s55"); A(f"s_add_u32 s55, s55, {WSLOT}"); A(f"s_and_b32 s55, s55, {4*WSLOT-1}")
    dma_x("s47",0)
    A("s_add_u32 s39, s39, 1"); A("s_cmp_lt_u32 s39, 7")
    A("s_waitcnt vmcnt(16)"); A("s_barrier")
    A("s_cbranch_scc1 L_ldloop")
    dma_w("s55"); A(f"s_add_u32 s55, s55, {WSLOT}")
    dma_x("s47",1)
    A("s_waitcnt vmcnt(16)"); A("s_barrier")
    dma_w("s55")
    A("s_waitcnt vmcnt(12)"); A("s_barrier")
    A("s_waitcnt vmcnt(4)"); A("s_barrier")
    A("s_waitcnt vmcnt(0)"); A("s_barrier")
    A("s_endpgm")
    A("L_compute:")
    A("s_load_dwordx4 s[8:11], s[0:1], 16")
    A("s_load_dwordx4 s[12:15], s[0:1], 32")
    A("s_load_dwordx2 s[16:17], s[0:1], 48")
    if stamps: A(f"s_load_dwordx2 s[18:19], s[0:1], {56 if stamps=='dbg' else 64}")
    A("s_lshr_b32 s35, s32, 1"); A("s_and_b32 s36, s32, 1")
    A("v_lshrrev_b32 v10, 4, v0")
    A("v_and_b32 v11, 15, v0")
    A("s_cmp_eq_u32 s32, 0"); A("s_cbranch_scc0 L_noparam")
    A("s_mul_i32 s44, s34, 160"); A("v_lshlrev_b32 v1, 2, v0"); A("v_add_u32 v1, s44, v1")
    A("s_mov_b32 exec_hi, 0xff")
    A("s_waitcnt lgkmcnt(0)")
    for pi,sp in enumerate(["s[8:9]","s[10:11]","s[12:13]","s[14:15]"]):
        A(f"global_load_dword v{92+pi}, v1, {sp}")
    A("s_mov_b64 exec, -1")
    A("L_noparam:")
    A("v_lshrrev_b32 v1, 1, v11"); A("v_xor_b32 v1, v1, v10"); A("v_lshlrev_b32 v1, 4, v1")
    A("v_lshl_add_u32 v1, v11, 7, v1")
    A("s_lshl_b32 s45, s35, 11"); A(f"s_add_u32 s45, s45, {XBASE}")
    A(f"v_add_u32 v{VXL}, s45, v1"); A(f"v_xor_b32 v{VXL+1}, 64, v{VXL}")
    A("v_lshrrev_b32 v1, 1, v10"); A("v_lshlrev_b32 v1, 4, v1"); A("v_and_b32 v4, 1, v10"); A("v_lshl_add_u32 v1, v4, 2, v1")
    A("v_bfe_u32 v4, v0, 2, 2"); A("v_add_u32 v1, v1, v4"); A("v_mul_u32_u24 v1, 160, v1")
    A("v_and_b32 v4, 3, v0"); A("v_lshl_add_u32 v1, v4, 3, v1")
    A(f"v_add_u32 v{VWE}, {WSLOT}, v1"); A(f"v_add_u32 v{VWO}, {2*WSLOT}, v1")
    A(f"v_mov_b32 v{VXA}, v1")
    A(f"v_mov_b32 v{VO5}, v1")
    for r in range(ACC,ACC+80): A(f"v_mov_b32 v{r}, 0")
    A(f"v_lshlrev_b32 v{VST}, 4, v10"); A(f"v_add_u32 v{VST}, {STB}, v{VST}")
    A("s_cmp_eq_u32 s32, 0"); A("s_cbranch_scc0 L_noparam2")
    A("s_mov_b32 exec_hi, 0xff")
    A("s_mov_b32 s52, 0x3fb8aa3b")
    A("s_waitcnt vmcnt(0)")
    for e in range(2):
        def ex(dst,src):
            if e==0: A(f"v_lshlrev_b32 v{dst}, 16, v{src}")
            else: A(f"v_and_b32 v{dst}, 0xffff0000, v{src}")
        ex(96,93); A("v_add_f32 v96, 0x3727c5ac, v96"); A("v_rsq_f32 v96, v96")
        ex(97,94); ex(98,92); ex(99,95)
        A("v_mul_f32 v96, v96, v97"); A("v_fma_f32 v99, -v98, v96, v99")
        A(f"v_mul_f32 v{100+e}, s52, v96"); A(f"v_mul_f32 v{102+e}, s52, v99")
    A(f"v_lshlrev_b32 v1, 3, v0"); A(f"v_add_u32 v1, {STB}, v1")
    A("ds_write_b64 v1, v[100:101]"); A("ds_write_b64 v1, v[102:103] offset:320")
    A("s_mov_b64 exec, -1")
    A("L_noparam2:")
    A("s_waitcnt lgkmcnt(0)")
    A("s_mov_b32 s28, s16"); A("s_mov_b32 s29, s17"); A("s_mov_b32 s30, 10485760"); A("s_mov_b32 s31, 0x20000")
    A("s_mov_b32 s52, 0x3fb8aa3b"); A("s_mov_b32 s53, 0x3fb8aa3b")
    touch=opt.get('touch',0)
    VT=126+2
    if touch:
        A("s_mov_b32 s20, s4"); A("s_mov_b32 s21, s5"); A("s_mov_b32 s22, 10485760"); A("s_mov_b32 s23, 0x20000")
        A("s_mov_b32 s24, s6"); A("s_mov_b32 s25, s7"); A("s_mov_b32 s26, 2457600"); A("s_mov_b32 s27, 0x20000")
    stamp(1)
    A("s_cmp_eq_u32 s36, 1"); A("s_cbranch_scc1 L_dh1")
    for dh in range(2):
        if dh==1: A("L_dh1:")
        tiles=[0,1,2] if dh==0 else [3,4,2]
        s0=0 if dh==0 else 4
        def valid(s,k): return 0<=s+k-1<=7
        mf=[]
        for ti in range(2):
            for s in range(8):
                for k in range(3):
                    if valid(s,k): mf.append((ti,s,s,k))
        for sl in range(4):
            for k in range(3):
                if valid(s0+sl,k): mf.append((2,sl,s0+sl,k))
        assert len(mf)==55
        def reads(setn,vw):
            xs=[f"ds_read_b128 {fx(setn,f)}, v{VXA} offset:{f*4096}" for f in range(8)]
            ws=[]
            for ti in range(3):
                for k in range(3):
                    for hh in range(2):
                        c,r=fwreg(setn,k,ti); r+=hh*2
                        ws.append(f"ds_read_b64_tr_b16 {c}[{r}:{r+1}], v{vw} offset:{k*5120+hh*1280+tiles[ti]*32}")
            return xs+ws
        if touch:
            pass
        A("s_barrier")
        stamp(2)
        A(f"v_mov_b32 v{VXA}, v{VXL}")
        for i,r in enumerate(reads(0,VO5)):
            A(r)
            if i%10==9: A("s_waitcnt lgkmcnt(4)")
        A("s_lshl_b32 s45, s35, 4"); A("v_add_u32 v1, s45, v11"); A("v_mul_u32_u24 v1, 10240, v1")
        A("v_lshrrev_b32 v4, 1, v10"); A("v_lshl_add_u32 v1, v4, 4, v1"); A("v_and_b32 v4, 1, v10")
        A(f"v_lshl_add_u32 v{VO}, v4, 5, v1")
        if dh: A(f"v_add_u32 v{VO}, 96, v{VO}")
        A("v_mul_u32_u24 v4, 1280, v4"); A("v_add3_u32 v1, v1, v4, 64")
        A(f"v_mov_b32 v{VO5}, v1")
        if touch:
            if dh==0:
                A("s_lshl_b32 s45, s35, 4"); A("v_add_u32 v11, s45, v0")
                A("v_lshrrev_b32 v4, 3, v11"); A("v_and_b32 v11, 7, v11"); A("v_mul_u32_u24 v11, 1280, v11")
                A("s_lshl_b32 s45, s34, 2"); A("v_add_u32 v4, s45, v4"); A("v_mul_u32_u24 v4, 10240, v4"); A("v_add_u32 v11, v11, v4")
                A("s_mul_i32 s45, s33, 327680"); A("v_add_u32 v11, s45, v11")
                A("v_cmp_gt_u32 vcc, 16, v0")
            else:
                A("s_lshr_b32 s45, s2, 3"); A("s_mul_i32 s45, s45, 60"); A("s_mul_i32 s46, s35, 30"); A("s_add_u32 s45, s45, s46")
                A("v_add_u32 v11, s45, v0"); A("v_mul_u32_u24 v4, 0xcccd, v11"); A("v_lshrrev_b32 v4, 19, v4")
                A("v_mul_u32_u24 v10, 10, v4"); A("v_sub_u32 v11, v11, v10"); A("v_lshlrev_b32 v11, 7, v11")
                A("v_lshrrev_b32 v10, 6, v4"); A("v_and_b32 v4, 63, v4"); A("v_mul_u32_u24 v10, 819200, v10"); A("v_mul_u32_u24 v4, 1280, v4")
                A("v_add3_u32 v11, v11, v10, v4")
                A("v_cmp_gt_u32 vcc, 30, v0")
            A("v_mov_b32 v4, 0x7ff00000"); A("s_nop 0"); A("v_cndmask_b32 v11, v4, v11, vcc")
            A(f"s_add_u32 s57, s84, {touch}"); A("s_cmp_ge_u32 s57, 10"); A("s_cselect_b32 s45, 10, 0"); A("s_sub_u32 s57, s57, s45")
            A(f"s_mul_i32 s57, s57, {128 if dh==0 else 81920}")
            for st in range(opt.get('touch0',3),touch):
                A(f"s_add_u32 s45, s84, {st}"); A("s_cmp_ge_u32 s45, 10"); A("s_cselect_b32 s46, 10, 0"); A("s_sub_u32 s45, s45, s46")
                A(f"s_mul_i32 s45, s45, {128 if dh==0 else 81920}")
                A(f"buffer_load_dword v1, v11, s[{20 if dh==0 else 24}:{23 if dh==0 else 27}], s45 offen {opt.get('txf','') if dh==0 else opt.get('twf','')}")
        A("s_waitcnt lgkmcnt(0)")
        A("s_barrier")
        A("s_mov_b32 s39, 0"); A("s_mov_b32 s47, 0")
        if opt.get('pstamp',False): A("s_mov_b32 m0, 0"); A("v_mov_b32 v10, 0")
        A(f"L_loop{dh}:")
        for par in range(2):
            cur=par; nxt=1-par
            pre=[]; book=[]
            if par==0:
                pre.append(f"v_add_u32 v{VXA}, s47, v{VXL+1}")
                vw=VWE
                book=[f"v_xor_b32 v{VWE}, 0x8000, v{VWE}", f"s_add_u32 s47, s47, {XSLOT}", f"s_cmp_eq_u32 s47, {3*XSLOT}", "s_cselect_b32 s47, 0, s47"]
            else:
                pre.append(f"v_add_u32 v{VXA}, s47, v{VXL}")
                vw=VWO
                book=[f"v_xor_b32 v{VWO}, 0x8000, v{VWO}", "s_add_u32 s39, s39, 1", "s_cmp_lt_u32 s39, 10"]
            if touch and par==0:
                sr=20 if dh==0 else 24
                wrap=1280 if dh==0 else 819200
                book=book+[f"s_cmp_eq_u32 s39, {10-touch}", f"s_cselect_b32 s{sr+2}, 0, s{sr+2}",
                      f"buffer_load_dword v1, v11, s[{sr}:{sr+3}], s57 offen {opt.get('txf','') if dh==0 else opt.get('twf','')}",
                      f"s_add_u32 s57, s57, {128 if dh==0 else 81920}", f"s_cmp_eq_u32 s57, {wrap}", "s_cselect_b32 s57, 0, s57"]
            rd=reads(nxt,vw) if opt.get('reads',True) else []
            gaps=[[] for _ in range(55)]
            gaps[0]+=pre
            g=1
            step=opt.get('rstep',1)
            for r in rd:
                gaps[g].append(r); g+=step if isinstance(step,int) else 1
            g=max(g,30)+4
            for b_ in book:
                gaps[g].append(b_); g+=1
            if opt.get('pstamp',False): A("s_memtime s[86:87]")
            for i,(ti,sl,s,k) in enumerate(mf):
                a=acc(ti,sl); f=s+k-1
                A(f"v_mfma_f32_16x16x32_bf16 v[{a}:{a+3}], {fw(cur,k,ti)}, {fx(cur,f)}, v[{a}:{a+3}]")
                for x in gaps[i]: A(x)
            A("s_waitcnt lgkmcnt(0)")
            if opt.get('pstamp',False):
                A("v_writelane_b32 v10, s86, m0"); A("s_addk_i32 m0, 1") if False else A("s_add_u32 m0, m0, 1")
                if par==1: A("s_cmp_lt_u32 s39, 10")
            A("s_barrier")
        A(f"s_cbranch_scc1 L_loop{dh}")
        stamp(3)
        Sreg=WV; Treg=WV+12; E=WV+24
        for ti in range(3):
            A(f"ds_read_b128 v[{Sreg+ti*4}:{Sreg+ti*4+3}], v{VST} offset:{tiles[ti]*64}")
            A(f"ds_read_b128 v[{Treg+ti*4}:{Treg+ti*4+3}], v{VST} offset:{320+tiles[ti]*64}")
        A("s_mul_i32 s44, s33, 327680"); A("s_mul_i32 s45, s34, 160"); A("s_add_u32 s44, s44, s45")
        A("s_waitcnt lgkmcnt(0)")
        def pair(a,ta,b,tb,vo,soff):
            for (r,t) in ((a,ta),(b,tb)):
                for h in range(2):
                    A(f"v_pk_fma_f32 v[{r+2*h}:{r+2*h+1}], v[{r+2*h}:{r+2*h+1}], v[{Sreg+t*4+2*h}:{Sreg+t*4+2*h+1}], v[{Treg+t*4+2*h}:{Treg+t*4+2*h+1}]")
            for i,r in enumerate([a,a+1,a+2,a+3,b,b+1,b+2,b+3]):
                A(f"v_exp_f32 v{E+i}, -v{r}")
            for h in range(4):
                A(f"v_pk_fma_f32 v[{E+2*h}:{E+2*h+1}], v[{E+2*h}:{E+2*h+1}], s[52:53], s[52:53]")
            for i in range(8): A(f"v_rcp_f32 v{E+i}, v{E+i}")
            A(f"s_add_u32 s45, s44, {soff}")
            for h,r in enumerate([a,a+2,b,b+2]):
                A(f"v_pk_mul_f32 v[{r}:{r+1}], v[{r}:{r+1}], v[{E+2*h}:{E+2*h+1}]")
            A(f"v_cvt_pk_bf16_f32 v{a}, v{a}, v{a+1}"); A(f"v_cvt_pk_bf16_f32 v{a+1}, v{a+2}, v{a+3}")
            A(f"v_cvt_pk_bf16_f32 v{a+2}, v{b}, v{b+1}"); A(f"v_cvt_pk_bf16_f32 v{a+3}, v{b+2}, v{b+3}")
            A("s_nop 1")
            A(f"v_permlane16_swap_b32 v{a}, v{a+2}"); A(f"v_permlane16_swap_b32 v{a+1}, v{a+3}")
            A(f"buffer_store_dwordx4 v[{a}:{a+3}], v{vo}, s[28:31], s45 offen {sf}")
        for s in range(8):
            pair(acc(0,s),0,acc(1,s),1,VO,s*1280)
        for sp in range(2):
            pair(acc(2,2*sp),2,acc(2,2*sp+1),2,VO5,(s0+2*sp)*1280)
        if stamps:
            stamp(4)
            A("s_waitcnt vmcnt(0)")
            stamp(5)
            A("s_waitcnt lgkmcnt(0)")
            A(f"s_cmp_eq_u32 s32, {opt.get('stampwave',0)}"); A("s_cbranch_scc0 L_end")
            A("v_mov_b32 v1, 0")
            if stamps=='dbg':
                A(f"s_cmp_eq_u32 s2, {opt.get('dbgwg',77)}"); A("s_cbranch_scc0 L_end")
                A("s_mov_b64 exec, 1")
                for k in range(5):
                    a=60+4*k
                    A(f"s_sub_u32 s44, s{a+4}, s{a}"); A(f"s_sub_u32 s45, s{a+6}, s{a+2}")
                    A("v_mov_b32 v2, s44"); A("v_mov_b32 v3, s45"); A(f"global_store_dwordx2 v1, v[2:3], s[18:19] offset:{k*8}"); A("s_nop 1")
            else:
                if opt.get('pstamp',False):
                    A("v_writelane_b32 v10, s74, m0")
                    A("s_lshl_b32 s44, s2, 8"); A("s_add_u32 s44, s44, 65536"); A("v_lshlrev_b32 v4, 2, v0"); A("v_add_u32 v4, s44, v4")
                    A("global_store_dword v4, v10, s[18:19]")
                A("s_mul_i32 s44, s2, 96"); A("s_add_u32 s18, s18, s44"); A("s_addc_u32 s19, s19, 0")
                for k,a in enumerate(range(60,84,2)):
                    A(f"v_mov_b32 v2, s{a}"); A(f"v_mov_b32 v3, s{a+1}"); A(f"global_store_dwordx2 v1, v[2:3], s[18:19] offset:{k*8}"); A("s_nop 1")
        if dh==0: A("s_endpgm")
    A("L_end:"); A("s_endpgm")
    A('.section .rodata,"a"'); A(".p2align 6"); A(f".amdhsa_kernel {NAME}")
    A(f"  .amdhsa_next_free_vgpr {NV+NA}"); A("  .amdhsa_next_free_sgpr 96"); A(f"  .amdhsa_accum_offset {NV}")
    A("  .amdhsa_group_segment_fixed_size 0"); A("  .amdhsa_kernarg_size 72"); A("  .amdhsa_user_sgpr_count 2")
    A("  .amdhsa_user_sgpr_kernarg_segment_ptr 1"); A("  .amdhsa_system_sgpr_workgroup_id_x 1"); A(".end_amdhsa_kernel")
    return "\n".join(L)+"\n"
if __name__=="__main__":
    opt={}
    for a in sys.argv[2:]:
        k,v=a.split('=',1); opt[k]=eval(v)
    open(sys.argv[1],"w").write(gen(opt))
```

```python
import sys
NAME="standalone__batchnorm__sampling_kernel"
HEADER=open('standalone__batchnorm__sampling.s.ref').read().split('; Override launch')[0]

WSLOT=16384; XBASE=65536; XSLOT=32768; LDS_BYTES=163840; STB=15424
VXL=2
VXA=4
VWE=5
VWO=6
VO=7; VO5=8; VST=9
ACC=12
WV=92
NV=132; NA=100; VT=128; VD=129
def acc(ti,s):
    return ACC+((ti*8+s)*4)
def fx(setn,f): return f"a[{setn*68+f*4}:{setn*68+f*4+3}]"
def fwreg(setn,k,ti):
    idx=(ti*3+k)*4
    return ('a',32+idx) if setn==0 else ('v',WV+idx)
def fw(setn,k,ti):
    c,r=fwreg(setn,k,ti); return f"{c}[{r}:{r+3}]"

def gen(opt):
    L=[]; A=L.append
    stamps=opt.get('stamps',False)
    xf=opt.get('xf',''); wf=opt.get('wf',''); sf=opt.get('sf','')
    def stamp(k):
        if stamps: A(f"s_memrealtime s[{60+4*k}:{61+4*k}]"); A(f"s_memtime s[{62+4*k}:{63+4*k}]")
    A(HEADER.rstrip())
    A(f"; @launch grid=(256,1,1) block=(512,1,1) lds={LDS_BYTES}")
    A('.amdgcn_target "amdgcn-amd-amdhsa--gfx950"')
    A(".text"); A(f".globl {NAME}"); A(".p2align 8"); A(f".type {NAME},@function"); A(f"{NAME}:")
    A("s_cmp_ge_u32 s2, 256"); A("s_cbranch_scc1 L_end")
    stamp(0)
    A("s_load_dwordx4 s[4:7], s[0:1], 0")
    A("v_lshrrev_b32 v1, 6, v0"); A("v_and_b32 v0, 63, v0")
    A("s_and_b32 s33, s2, 7"); A("v_readfirstlane_b32 s32, v1")
    A("s_lshr_b32 s34, s2, 3"); A("s_lshr_b32 s35, s34, 3"); A("s_and_b32 s34, s34, 7")
    if opt.get('rot',True):
        A("s_mul_i32 s84, s33, 5"); A("s_lshr_b32 s84, s84, 2")
    else: A("s_mov_b32 s84, 0")
    A("s_lshl_b32 s33, s33, 2"); A("s_add_u32 s33, s33, s35")
    A("s_cmp_lt_u32 s32, 4"); A("s_cbranch_scc1 L_compute")
    A("s_sub_u32 s32, s32, 4")
    A("v_lshrrev_b32 v2, 4, v0")
    A("v_lshrrev_b32 v5, 3, v0")
    A("v_and_b32 v6, 7, v0"); A("v_xor_b32 v6, v6, v2")
    A("v_mul_u32_u24 v5, 10240, v5")
    A("v_lshlrev_b32 v7, 4, v6"); A("v_xor_b32 v6, 4, v6"); A("v_lshlrev_b32 v6, 4, v6")
    VX=8; VW=12
    A(f"v_add_u32 v{VX}, v5, v7")
    A(f"v_add_u32 v{VX+1}, v5, v6"); A(f"v_add_u32 v{VX+1}, {81920-1024}, v{VX+1}")
    A(f"v_add_u32 v{VX+2}, {2*(81920-1024)}, v{VX}")
    A(f"v_add_u32 v{VX+3}, {2*(81920-1024)}, v{VX+1}")
    A("s_mul_i32 s37, s33, 327680"); A("s_mul_i32 s45, s32, 1280"); A("s_add_u32 s37, s37, s45")
    A("s_add_u32 s59, s37, 5120")
    A("s_lshl_b32 s40, s32, 12"); A(f"s_add_u32 s40, s40, {XBASE}"); A("s_add_u32 s41, s40, 16384")
    A("s_mul_i32 s42, s32, 3840")
    A("s_mul_i32 s44, s34, 160"); A("s_mul_i32 s45, s32, 240")
    for jj in range(4):
        A(f"v_add_u32 v5, s45, v0")
        if jj: A(f"v_add_u32 v5, {60*jj}, v5")
        A("v_mul_u32_u24 v6, 0xcccd, v5"); A("v_lshrrev_b32 v6, 19, v6")
        A("v_mul_u32_u24 v7, 10, v6"); A("v_sub_u32 v7, v5, v7")
        A("v_min_u32 v6, 95, v6")
        A("v_lshrrev_b32 v16, 5, v6"); A("v_and_b32 v6, 31, v6")
        A("v_and_b32 v17, 4, v6"); A("v_lshlrev_b32 v17, 1, v17"); A("v_and_b32 v18, 8, v6"); A("v_lshrrev_b32 v18, 1, v18")
        A("v_and_b32 v6, 0x13, v6"); A("v_or3_b32 v6, v6, v17, v18")
        A("v_mul_u32_u24 v16, 819200, v16"); A("v_mul_u32_u24 v6, 1280, v6")
        A("v_lshlrev_b32 v7, 4, v7"); A("v_add3_u32 v6, v6, v16, v7")
        A(f"v_add_u32 v{VW+jj}, s44, v6")
        if jj: A(f"v_subrev_u32 v{VW+jj}, {960*jj}, v{VW+jj}")
    A("s_lshl_b32 s58, s84, 7"); A("s_mul_i32 s38, s84, 81920")
    def adv_x(): A("s_add_u32 s58, s58, 128"); A("s_cmp_eq_u32 s58, 1280"); A("s_cselect_b32 s58, 0, s58")
    def adv_w(): A("s_add_u32 s38, s38, 40960"); A("s_cmp_eq_u32 s38, 819200"); A("s_cselect_b32 s38, 0, s38")
    def dma_x(slotoff, h):
        if isinstance(slotoff,int): A(f"s_add_u32 m0, s{40+h}, {slotoff}")
        else: A(f"s_add_u32 m0, s{40+h}, {slotoff}")
        A(f"s_add_u32 s56, s{59 if h else 37}, s58")
        for jj in range(4):
            A(f"buffer_load_dwordx4 v{VX+jj}, s[20:23], s56 offen offset:{jj*1024} {xf} lds")
    def dma_w(slotoff):
        A(f"s_add_u32 m0, s42, {slotoff}")
        A("s_nop 0")
        for jj in range(4):
            A(f"buffer_load_dwordx4 v{VW+jj}, s[24:27], s38 offen offset:{jj*960} {wf} lds")
        adv_w()
    A("s_waitcnt lgkmcnt(0)")
    A("s_mov_b32 s20, s4"); A("s_mov_b32 s21, s5"); A("s_mov_b32 s22, 10485760"); A("s_mov_b32 s23, 0x20000")
    A("s_mov_b32 s24, s6"); A("s_mov_b32 s25, s7"); A("s_mov_b32 s26, 2457600"); A("s_mov_b32 s27, 0x20000")
    dma_x(0,0); dma_x(0,1); adv_x()
    dma_w(0); dma_w(WSLOT)
    dma_x(XSLOT,0)
    dma_w(2*WSLOT)
    A("s_waitcnt vmcnt(12)"); A("s_barrier")
    dma_x(XSLOT,1); adv_x()
    dma_w(3*WSLOT)
    A("s_waitcnt vmcnt(16)"); A("s_barrier")
    dma_x(2*XSLOT,0)
    A(f"s_mov_b32 s47, {2*XSLOT}"); A("s_mov_b32 s55, 0"); A("s_mov_b32 s39, 0")
    A("L_ldloop:")
    dma_w("s55"); A(f"s_add_u32 s55, s55, {WSLOT}")
    dma_x("s47",1); adv_x()
    A(f"s_add_u32 s47, s47, {XSLOT}"); A(f"s_cmp_eq_u32 s47, {3*XSLOT}"); A("s_cselect_b32 s47, 0, s47")
    A("s_waitcnt vmcnt(16)"); A("s_barrier")
    dma_w("s55"); A(f"s_add_u32 s55, s55, {WSLOT}"); A(f"s_and_b32 s55, s55, {4*WSLOT-1}")
    dma_x("s47",0)
    A("s_add_u32 s39, s39, 1"); A("s_cmp_lt_u32 s39, 7")
    A("s_waitcnt vmcnt(16)"); A("s_barrier")
    A("s_cbranch_scc1 L_ldloop")
    dma_w("s55"); A(f"s_add_u32 s55, s55, {WSLOT}")
    dma_x("s47",1)
    A("s_waitcnt vmcnt(16)"); A("s_barrier")
    dma_w("s55")
    A("s_waitcnt vmcnt(12)"); A("s_barrier")
    A("s_waitcnt vmcnt(4)"); A("s_barrier")
    A("s_waitcnt vmcnt(0)"); A("s_barrier")
    A("s_endpgm")
    A("L_compute:")
    A("s_load_dwordx4 s[8:11], s[0:1], 16")
    A("s_load_dwordx4 s[12:15], s[0:1], 32")
    A("s_load_dwordx2 s[16:17], s[0:1], 48")
    if stamps: A(f"s_load_dwordx2 s[18:19], s[0:1], {56 if stamps=='dbg' else 64}")
    A("s_lshr_b32 s35, s32, 1"); A("s_and_b32 s36, s32, 1")
    A("v_lshrrev_b32 v10, 4, v0")
    A("v_and_b32 v11, 15, v0")
    A("s_cmp_eq_u32 s32, 0"); A("s_cbranch_scc0 L_noparam")
    A("s_mul_i32 s44, s34, 160"); A("v_lshlrev_b32 v1, 2, v0"); A("v_add_u32 v1, s44, v1")
    A("s_mov_b32 exec_hi, 0xff")
    A("s_waitcnt lgkmcnt(0)")
    for pi,sp in enumerate(["s[8:9]","s[10:11]","s[12:13]","s[14:15]"]):
        A(f"global_load_dword v{92+pi}, v1, {sp}")
    A("s_mov_b64 exec, -1")
    A("L_noparam:")
    touch=opt.get('touch',0)
    tinit=opt.get('tinit',list(range(opt.get('touch0',0),touch))); tA=opt.get('tA',[])
    ntinit=len(tinit)
    if touch:
        A("s_cmp_eq_u32 s36, 1"); A("s_cbranch_scc1 L_tw")
        A("s_lshl_b32 s45, s35, 4"); A(f"v_add_u32 v{VT}, s45, v0")
        A(f"v_lshrrev_b32 v4, 3, v{VT}"); A(f"v_and_b32 v{VT}, 7, v{VT}"); A(f"v_mul_u32_u24 v{VT}, 1280, v{VT}")
        A("s_lshl_b32 s45, s34, 2"); A("v_add_u32 v4, s45, v4"); A("v_mul_u32_u24 v4, 10240, v4"); A(f"v_add_u32 v{VT}, v{VT}, v4")
        A("s_mul_i32 s45, s33, 327680"); A(f"v_add_u32 v{VT}, s45, v{VT}")
        A("v_cmp_gt_u32 vcc, 16, v0"); A("s_mov_b32 s48, 128"); A("s_mov_b32 s49, 1280")
        A("s_waitcnt lgkmcnt(0)")
        A("s_mov_b32 s20, s4"); A("s_mov_b32 s21, s5"); A("s_mov_b32 s22, 10485760")
        A("s_branch L_tj")
        A("L_tw:")
        A("s_lshr_b32 s45, s2, 3"); A("s_mul_i32 s45, s45, 60"); A("s_mul_i32 s46, s35, 30"); A("s_add_u32 s45, s45, s46")
        A(f"v_add_u32 v{VT}, s45, v0"); A(f"v_mul_u32_u24 v4, 0xcccd, v{VT}"); A("v_lshrrev_b32 v4, 19, v4")
        A(f"v_mul_u32_u24 v1, 10, v4"); A(f"v_sub_u32 v{VT}, v{VT}, v1"); A(f"v_lshlrev_b32 v{VT}, 7, v{VT}")
        A("v_lshrrev_b32 v1, 6, v4"); A("v_and_b32 v4, 63, v4"); A("v_mul_u32_u24 v1, 819200, v1"); A("v_mul_u32_u24 v4, 1280, v4")
        A(f"v_add3_u32 v{VT}, v{VT}, v1, v4")
        A("v_cmp_gt_u32 vcc, 30, v0"); A("s_mov_b32 s48, 81920"); A("s_mov_b32 s49, 819200")
        A("s_waitcnt lgkmcnt(0)")
        A("s_mov_b32 s20, s6"); A("s_mov_b32 s21, s7"); A("s_mov_b32 s22, 2457600")
        A("L_tj:")
        A("s_mov_b32 s23, 0x20000")
        A("v_mov_b32 v4, 0x7ff00000"); A(f"v_cndmask_b32 v{VT}, v4, v{VT}, vcc")
        A("s_mul_i32 s57, s84, s48")
        def tstage(st,dst):
            A(f"s_add_u32 {dst}, s84, {st}"); A(f"s_cmp_ge_u32 {dst}, 10"); A("s_cselect_b32 s46, 10, 0"); A(f"s_sub_u32 {dst}, {dst}, s46"); A(f"s_mul_i32 {dst}, {dst}, s48")
        for st in tinit:
            tstage(st,"s45")
            A(f"buffer_load_dword v{VD}, v{VT}, s[20:23], s45 offen {opt.get('tf','')}")
        tstage(touch,"s57")
    A("v_lshrrev_b32 v1, 1, v11"); A("v_xor_b32 v1, v1, v10"); A("v_lshlrev_b32 v1, 4, v1")
    A("v_lshl_add_u32 v1, v11, 7, v1")
    A("s_lshl_b32 s45, s35, 11"); A(f"s_add_u32 s45, s45, {XBASE}")
    A(f"v_add_u32 v{VXL}, s45, v1"); A(f"v_xor_b32 v{VXL+1}, 64, v{VXL}")
    A("v_lshrrev_b32 v1, 1, v10"); A("v_lshlrev_b32 v1, 4, v1"); A("v_and_b32 v4, 1, v10"); A("v_lshl_add_u32 v1, v4, 2, v1")
    A("v_bfe_u32 v4, v0, 2, 2"); A("v_add_u32 v1, v1, v4"); A("v_mul_u32_u24 v1, 160, v1")
    A("v_and_b32 v4, 3, v0"); A("v_lshl_add_u32 v1, v4, 3, v1")
    A(f"v_add_u32 v{VWE}, {WSLOT}, v1"); A(f"v_add_u32 v{VWO}, {2*WSLOT}, v1")
    A(f"v_mov_b32 v{VXA}, v1")
    A(f"v_mov_b32 v{VO5}, v1")
    for r in range(ACC,ACC+80): A(f"v_mov_b32 v{r}, 0")
    A(f"v_lshlrev_b32 v{VST}, 4, v10"); A(f"v_add_u32 v{VST}, {STB}, v{VST}")
    A("s_cmp_eq_u32 s32, 0"); A("s_cbranch_scc0 L_noparam2")
    A("s_mov_b32 exec_hi, 0xff")
    A("s_mov_b32 s52, 0x3fb8aa3b")
    A(f"s_waitcnt vmcnt({ntinit})")
    for e in range(2):
        def ex(dst,src):
            if e==0: A(f"v_lshlrev_b32 v{dst}, 16, v{src}")
            else: A(f"v_and_b32 v{dst}, 0xffff0000, v{src}")
        ex(96,93); A("v_add_f32 v96, 0x3727c5ac, v96"); A("v_rsq_f32 v96, v96")
        ex(97,94); ex(98,92); ex(99,95)
        A("v_mul_f32 v96, v96, v97"); A("v_fma_f32 v99, -v98, v96, v99")
        A(f"v_mul_f32 v{100+e}, s52, v96"); A(f"v_mul_f32 v{102+e}, s52, v99")
    A(f"v_lshlrev_b32 v1, 3, v0"); A(f"v_add_u32 v1, {STB}, v1")
    A("ds_write_b64 v1, v[100:101]"); A("ds_write_b64 v1, v[102:103] offset:320")
    A("s_mov_b64 exec, -1")
    A("L_noparam2:")
    A("s_waitcnt lgkmcnt(0)")
    A("s_mov_b32 s28, s16"); A("s_mov_b32 s29, s17"); A("s_mov_b32 s30, 10485760"); A("s_mov_b32 s31, 0x20000")
    A("s_mov_b32 s52, 0x3fb8aa3b"); A("s_mov_b32 s53, 0x3fb8aa3b")
    stamp(1)
    A("s_cmp_eq_u32 s36, 1"); A("s_cbranch_scc1 L_dh1")
    for dh in range(2):
        if dh==1: A("L_dh1:")
        tiles=[0,1,2] if dh==0 else [3,4,2]
        s0=0 if dh==0 else 4
        def valid(s,k): return 0<=s+k-1<=7
        mf=[]
        for ti in range(2):
            for s in range(8):
                for k in range(3):
                    if valid(s,k): mf.append((ti,s,s,k))
        for sl in range(4):
            for k in range(3):
                if valid(s0+sl,k): mf.append((2,sl,s0+sl,k))
        assert len(mf)==55
        def reads(setn,vw):
            xs=[f"ds_read_b128 {fx(setn,f)}, v{VXA} offset:{f*4096}" for f in range(8)]
            ws=[]
            for ti in range(3):
                for k in range(3):
                    for hh in range(2):
                        c,r=fwreg(setn,k,ti); r+=hh*2
                        ws.append(f"ds_read_b64_tr_b16 {c}[{r}:{r+1}], v{vw} offset:{k*5120+hh*1280+tiles[ti]*32}")
            return xs+ws
        if touch:
            pass
        A("s_barrier")
        stamp(2)
        if touch:
            for st in tA:
                tstage(st,"s45")
                A(f"buffer_load_dword v{VD}, v{VT}, s[20:23], s45 offen {opt.get('tf','')}")
        A(f"v_mov_b32 v{VXA}, v{VXL}")
        for i,r in enumerate(reads(0,VO5)):
            A(r)
            if i%10==9: A("s_waitcnt lgkmcnt(4)")
        A("s_lshl_b32 s45, s35, 4"); A("v_add_u32 v1, s45, v11"); A("v_mul_u32_u24 v1, 10240, v1")
        A("v_lshrrev_b32 v4, 1, v10"); A("v_lshl_add_u32 v1, v4, 4, v1"); A("v_and_b32 v4, 1, v10")
        A(f"v_lshl_add_u32 v{VO}, v4, 5, v1")
        if dh: A(f"v_add_u32 v{VO}, 96, v{VO}")
        A("v_mul_u32_u24 v4, 1280, v4"); A("v_add3_u32 v1, v1, v4, 64")
        A(f"v_mov_b32 v{VO5}, v1")
        A("s_waitcnt lgkmcnt(0)")
        A("s_barrier")
        A("s_mov_b32 s39, 0"); A("s_mov_b32 s47, 0")
        if opt.get('pstamp',False): A("s_mov_b32 m0, 0"); A("v_mov_b32 v10, 0")
        A(f"L_loop{dh}:")
        for par in range(2):
            cur=par; nxt=1-par
            pre=[]; book=[]
            if par==0:
                pre.append(f"v_add_u32 v{VXA}, s47, v{VXL+1}")
                vw=VWE
                book=[f"v_xor_b32 v{VWE}, 0x8000, v{VWE}", f"s_add_u32 s47, s47, {XSLOT}", f"s_cmp_eq_u32 s47, {3*XSLOT}", "s_cselect_b32 s47, 0, s47"]
            else:
                pre.append(f"v_add_u32 v{VXA}, s47, v{VXL}")
                vw=VWO
                book=[f"v_xor_b32 v{VWO}, 0x8000, v{VWO}", "s_add_u32 s39, s39, 1", "s_cmp_lt_u32 s39, 10"]
            if touch and par==opt.get('tpar',0):
                book=book+[f"s_cmp_eq_u32 s39, {10-touch+(1 if par==1 else 0)}", f"s_cselect_b32 s22, 0, s22",
                      f"buffer_load_dword v{VD}, v{VT}, s[20:23], s57 offen {opt.get('tf','')}",
                      "s_add_u32 s57, s57, s48", "s_cmp_eq_u32 s57, s49", "s_cselect_b32 s57, 0, s57"]
                if par==1: book=book+["s_cmp_lt_u32 s39, 10"]
            rd=reads(nxt,vw) if opt.get('reads',True) else []
            gaps=[[] for _ in range(55)]
            gaps[0]+=pre
            g=1
            step=opt.get('rstep',1)
            for r in rd:
                gaps[g].append(r); g+=step if isinstance(step,int) else 1
            g=max(g,30)+4
            for b_ in book:
                gaps[g].append(b_); g+=1
            if opt.get('pstamp',False): A("s_memtime s[86:87]")
            for i,(ti,sl,s,k) in enumerate(mf):
                a=acc(ti,sl); f=s+k-1
                A(f"v_mfma_f32_16x16x32_bf16 v[{a}:{a+3}], {fw(cur,k,ti)}, {fx(cur,f)}, v[{a}:{a+3}]")
                for x in gaps[i]: A(x)
            A("s_waitcnt lgkmcnt(0)")
            if opt.get('pstamp',False):
                A("v_writelane_b32 v10, s86, m0"); A("s_addk_i32 m0, 1") if False else A("s_add_u32 m0, m0, 1")
                if par==1: A("s_cmp_lt_u32 s39, 10")
            A("s_barrier")
        A(f"s_cbranch_scc1 L_loop{dh}")
        stamp(3)
        Sreg=WV; Treg=WV+12; E=WV+24
        for ti in range(3):
            A(f"ds_read_b128 v[{Sreg+ti*4}:{Sreg+ti*4+3}], v{VST} offset:{tiles[ti]*64}")
            A(f"ds_read_b128 v[{Treg+ti*4}:{Treg+ti*4+3}], v{VST} offset:{320+tiles[ti]*64}")
        A("s_mul_i32 s44, s33, 327680"); A("s_mul_i32 s45, s34, 160"); A("s_add_u32 s44, s44, s45")
        A("s_waitcnt lgkmcnt(0)")
        def pair(a,ta,b,tb,vo,soff):
            for (r,t) in ((a,ta),(b,tb)):
                for h in range(2):
                    A(f"v_pk_fma_f32 v[{r+2*h}:{r+2*h+1}], v[{r+2*h}:{r+2*h+1}], v[{Sreg+t*4+2*h}:{Sreg+t*4+2*h+1}], v[{Treg+t*4+2*h}:{Treg+t*4+2*h+1}]")
            for i,r in enumerate([a,a+1,a+2,a+3,b,b+1,b+2,b+3]):
                A(f"v_exp_f32 v{E+i}, -v{r}")
            for h in range(4):
                A(f"v_pk_fma_f32 v[{E+2*h}:{E+2*h+1}], v[{E+2*h}:{E+2*h+1}], s[52:53], s[52:53]")
            for i in range(8): A(f"v_rcp_f32 v{E+i}, v{E+i}")
            A(f"s_add_u32 s45, s44, {soff}")
            for h,r in enumerate([a,a+2,b,b+2]):
                A(f"v_pk_mul_f32 v[{r}:{r+1}], v[{r}:{r+1}], v[{E+2*h}:{E+2*h+1}]")
            A(f"v_cvt_pk_bf16_f32 v{a}, v{a}, v{a+1}"); A(f"v_cvt_pk_bf16_f32 v{a+1}, v{a+2}, v{a+3}")
            A(f"v_cvt_pk_bf16_f32 v{a+2}, v{b}, v{b+1}"); A(f"v_cvt_pk_bf16_f32 v{a+3}, v{b+2}, v{b+3}")
            A("s_nop 1")
            A(f"v_permlane16_swap_b32 v{a}, v{a+2}"); A(f"v_permlane16_swap_b32 v{a+1}, v{a+3}")
            A(f"buffer_store_dwordx4 v[{a}:{a+3}], v{vo}, s[28:31], s45 offen {sf}")
        for s in range(8):
            pair(acc(0,s),0,acc(1,s),1,VO,s*1280)
        for sp in range(2):
            pair(acc(2,2*sp),2,acc(2,2*sp+1),2,VO5,(s0+2*sp)*1280)
        if stamps:
            stamp(4)
            A("s_waitcnt vmcnt(0)")
            stamp(5)
            A("s_waitcnt lgkmcnt(0)")
            A(f"s_cmp_eq_u32 s32, {opt.get('stampwave',0)}"); A("s_cbranch_scc0 L_end")
            A("v_mov_b32 v1, 0")
            if stamps=='dbg':
                A(f"s_cmp_eq_u32 s2, {opt.get('dbgwg',77)}"); A("s_cbranch_scc0 L_end")
                A("s_mov_b64 exec, 1")
                for k in range(5):
                    a=60+4*k
                    A(f"s_sub_u32 s44, s{a+4}, s{a}"); A(f"s_sub_u32 s45, s{a+6}, s{a+2}")
                    A("v_mov_b32 v2, s44"); A("v_mov_b32 v3, s45"); A(f"global_store_dwordx2 v1, v[2:3], s[18:19] offset:{k*8}"); A("s_nop 1")
            else:
                if opt.get('pstamp',False):
                    A("v_writelane_b32 v10, s74, m0")
                    A("s_lshl_b32 s44, s2, 8"); A("s_add_u32 s44, s44, 65536"); A("v_lshlrev_b32 v4, 2, v0"); A("v_add_u32 v4, s44, v4")
                    A("global_store_dword v4, v10, s[18:19]")
                A("s_mul_i32 s44, s2, 96"); A("s_add_u32 s18, s18, s44"); A("s_addc_u32 s19, s19, 0")
                for k,a in enumerate(range(60,84,2)):
                    A(f"v_mov_b32 v2, s{a}"); A(f"v_mov_b32 v3, s{a+1}"); A(f"global_store_dwordx2 v1, v[2:3], s[18:19] offset:{k*8}"); A("s_nop 1")
        if dh==0: A("s_endpgm")
    A("L_end:"); A("s_endpgm")
    A('.section .rodata,"a"'); A(".p2align 6"); A(f".amdhsa_kernel {NAME}")
    A(f"  .amdhsa_next_free_vgpr {NV+NA}"); A("  .amdhsa_next_free_sgpr 96"); A(f"  .amdhsa_accum_offset {NV}")
    A("  .amdhsa_group_segment_fixed_size 0"); A("  .amdhsa_kernarg_size 72"); A("  .amdhsa_user_sgpr_count 2")
    A("  .amdhsa_user_sgpr_kernarg_segment_ptr 1"); A("  .amdhsa_system_sgpr_workgroup_id_x 1"); A(".end_amdhsa_kernel")
    return "\n".join(L)+"\n"
if __name__=="__main__":
    opt={}
    for a in sys.argv[2:]:
        k,v=a.split('=',1); opt[k]=eval(v)
    open(sys.argv[1],"w").write(gen(opt))
```

```python
import sys
NAME="standalone__batchnorm__sampling_kernel"
HEADER=open('standalone__batchnorm__sampling.s.ref').read().split('; Override launch')[0]

WSLOT=16384; XBASE=65536; XSLOT=32768; LDS_BYTES=163840; STB=15424
VXL=2
VXA=4
VWE=5
VWO=6
VO=7; VO5=8; VST=9
ACC=12
WV=92
NV=132; NA=100; VT=128; VD=129
def acc(ti,s):
    return ACC+((ti*8+s)*4)
def fx(setn,f): return f"a[{setn*68+f*4}:{setn*68+f*4+3}]"
def fwreg(setn,k,ti):
    idx=(ti*3+k)*4
    return ('a',32+idx) if setn==0 else ('v',WV+idx)
def fw(setn,k,ti):
    c,r=fwreg(setn,k,ti); return f"{c}[{r}:{r+3}]"

def gen(opt):
    L=[]; A=L.append
    stamps=opt.get('stamps',False)
    xf=opt.get('xf',''); wf=opt.get('wf',''); sf=opt.get('sf','')
    def stamp(k):
        if stamps: A(f"s_memrealtime s[{60+4*k}:{61+4*k}]"); A(f"s_memtime s[{62+4*k}:{63+4*k}]")
    A(HEADER.rstrip())
    A(f"; @launch grid=(256,1,1) block=(512,1,1) lds={LDS_BYTES}")
    A('.amdgcn_target "amdgcn-amd-amdhsa--gfx950"')
    A(".text"); A(f".globl {NAME}"); A(".p2align 8"); A(f".type {NAME},@function"); A(f"{NAME}:")
    A("s_cmp_ge_u32 s2, 256"); A("s_cbranch_scc1 L_end")
    stamp(0)
    A("s_load_dwordx4 s[4:7], s[0:1], 0")
    A("v_lshrrev_b32 v1, 6, v0"); A("v_and_b32 v0, 63, v0")
    A("s_and_b32 s33, s2, 7"); A("v_readfirstlane_b32 s32, v1")
    A("s_lshr_b32 s34, s2, 3"); A("s_lshr_b32 s35, s34, 3"); A("s_and_b32 s34, s34, 7")
    if opt.get('rot',True):
        A("s_mul_i32 s84, s33, 5"); A("s_lshr_b32 s84, s84, 2")
    else: A("s_mov_b32 s84, 0")
    A("s_lshl_b32 s33, s33, 2"); A("s_add_u32 s33, s33, s35")
    A("s_cmp_lt_u32 s32, 4"); A("s_cbranch_scc1 L_compute")
    A("s_sub_u32 s32, s32, 4")
    A("v_lshrrev_b32 v2, 4, v0")
    A("v_lshrrev_b32 v5, 3, v0")
    A("v_and_b32 v6, 7, v0"); A("v_xor_b32 v6, v6, v2")
    A("v_mul_u32_u24 v5, 10240, v5")
    A("v_lshlrev_b32 v7, 4, v6"); A("v_xor_b32 v6, 4, v6"); A("v_lshlrev_b32 v6, 4, v6")
    VX=8; VW=12
    A(f"v_add_u32 v{VX}, v5, v7")
    A(f"v_add_u32 v{VX+1}, v5, v6"); A(f"v_add_u32 v{VX+1}, {81920-1024}, v{VX+1}")
    A(f"v_add_u32 v{VX+2}, {2*(81920-1024)}, v{VX}")
    A(f"v_add_u32 v{VX+3}, {2*(81920-1024)}, v{VX+1}")
    A("s_mul_i32 s37, s33, 327680"); A("s_mul_i32 s45, s32, 1280"); A("s_add_u32 s37, s37, s45")
    A("s_add_u32 s59, s37, 5120")
    A("s_lshl_b32 s40, s32, 12"); A(f"s_add_u32 s40, s40, {XBASE}"); A("s_add_u32 s41, s40, 16384")
    A("s_mul_i32 s42, s32, 3840")
    dmap=opt.get('dmap',0)
    if dmap:
        A("s_lshl_b32 s44, s34, 7"); A("s_lshl_b32 s46, s34, 5"); A("s_add_u32 s46, s46, 896"); A("s_mul_i32 s45, s32, 240")
    else:
        A("s_mul_i32 s44, s34, 160"); A("s_mul_i32 s45, s32, 240")
    for jj in range(4):
        A(f"v_add_u32 v5, s45, v0")
        if jj: A(f"v_add_u32 v5, {60*jj}, v5")
        A("v_mul_u32_u24 v6, 0xcccd, v5"); A("v_lshrrev_b32 v6, 19, v6")
        A("v_mul_u32_u24 v7, 10, v6"); A("v_sub_u32 v7, v5, v7")
        A("v_min_u32 v6, 95, v6")
        A("v_lshrrev_b32 v16, 5, v6"); A("v_and_b32 v6, 31, v6")
        A("v_and_b32 v17, 4, v6"); A("v_lshlrev_b32 v17, 1, v17"); A("v_and_b32 v18, 8, v6"); A("v_lshrrev_b32 v18, 1, v18")
        A("v_and_b32 v6, 0x13, v6"); A("v_or3_b32 v6, v6, v17, v18")
        A("v_mul_u32_u24 v16, 819200, v16"); A("v_mul_u32_u24 v6, 1280, v6")
        if dmap:
            A("v_cmp_gt_u32 vcc, 8, v7"); A("v_lshlrev_b32 v7, 4, v7"); A("v_mov_b32 v17, s46"); A("v_mov_b32 v18, s44")
            A("v_cndmask_b32 v17, v17, v18, vcc"); A("v_add3_u32 v6, v6, v16, v7"); A(f"v_add_u32 v{VW+jj}, v17, v6")
        else:
            A("v_lshlrev_b32 v7, 4, v7"); A("v_add3_u32 v6, v6, v16, v7")
            A(f"v_add_u32 v{VW+jj}, s44, v6")
        if jj: A(f"v_subrev_u32 v{VW+jj}, {960*jj}, v{VW+jj}")
    A("s_lshl_b32 s58, s84, 7"); A("s_mul_i32 s38, s84, 81920")
    def adv_x(): A("s_add_u32 s58, s58, 128"); A("s_cmp_eq_u32 s58, 1280"); A("s_cselect_b32 s58, 0, s58")
    def adv_w(): A("s_add_u32 s38, s38, 40960"); A("s_cmp_eq_u32 s38, 819200"); A("s_cselect_b32 s38, 0, s38")
    def dma_x(slotoff, h):
        if isinstance(slotoff,int): A(f"s_add_u32 m0, s{40+h}, {slotoff}")
        else: A(f"s_add_u32 m0, s{40+h}, {slotoff}")
        A(f"s_add_u32 s56, s{59 if h else 37}, s58")
        for jj in range(4):
            A(f"buffer_load_dwordx4 v{VX+jj}, s[20:23], s56 offen offset:{jj*1024} {xf} lds")
    def dma_w(slotoff):
        A(f"s_add_u32 m0, s42, {slotoff}")
        A("s_nop 0")
        for jj in range(4):
            A(f"buffer_load_dwordx4 v{VW+jj}, s[24:27], s38 offen offset:{jj*960} {wf} lds")
        adv_w()
    A("s_waitcnt lgkmcnt(0)")
    A("s_mov_b32 s20, s4"); A("s_mov_b32 s21, s5"); A("s_mov_b32 s22, 10485760"); A("s_mov_b32 s23, 0x20000")
    A("s_mov_b32 s24, s6"); A("s_mov_b32 s25, s7"); A("s_mov_b32 s26, 2457600"); A("s_mov_b32 s27, 0x20000")
    dma_x(0,0); dma_x(0,1); adv_x()
    dma_w(0); dma_w(WSLOT)
    dma_x(XSLOT,0)
    dma_w(2*WSLOT)
    A("s_waitcnt vmcnt(12)"); A("s_barrier")
    dma_x(XSLOT,1); adv_x()
    dma_w(3*WSLOT)
    A("s_waitcnt vmcnt(16)"); A("s_barrier")
    dma_x(2*XSLOT,0)
    A(f"s_mov_b32 s47, {2*XSLOT}"); A("s_mov_b32 s55, 0"); A("s_mov_b32 s39, 0")
    A("L_ldloop:")
    dma_w("s55"); A(f"s_add_u32 s55, s55, {WSLOT}")
    dma_x("s47",1); adv_x()
    A(f"s_add_u32 s47, s47, {XSLOT}"); A(f"s_cmp_eq_u32 s47, {3*XSLOT}"); A("s_cselect_b32 s47, 0, s47")
    A("s_waitcnt vmcnt(16)"); A("s_barrier")
    dma_w("s55"); A(f"s_add_u32 s55, s55, {WSLOT}"); A(f"s_and_b32 s55, s55, {4*WSLOT-1}")
    dma_x("s47",0)
    A("s_add_u32 s39, s39, 1"); A("s_cmp_lt_u32 s39, 7")
    A("s_waitcnt vmcnt(16)"); A("s_barrier")
    A("s_cbranch_scc1 L_ldloop")
    dma_w("s55"); A(f"s_add_u32 s55, s55, {WSLOT}")
    dma_x("s47",1)
    A("s_waitcnt vmcnt(16)"); A("s_barrier")
    dma_w("s55")
    A("s_waitcnt vmcnt(12)"); A("s_barrier")
    A("s_waitcnt vmcnt(4)"); A("s_barrier")
    A("s_waitcnt vmcnt(0)"); A("s_barrier")
    A("s_endpgm")
    A("L_compute:")
    A("s_load_dwordx4 s[8:11], s[0:1], 16")
    A("s_load_dwordx4 s[12:15], s[0:1], 32")
    A("s_load_dwordx2 s[16:17], s[0:1], 48")
    if stamps: A(f"s_load_dwordx2 s[18:19], s[0:1], {56 if stamps=='dbg' else 64}")
    A("s_lshr_b32 s35, s32, 1"); A("s_and_b32 s36, s32, 1")
    A("v_lshrrev_b32 v10, 4, v0")
    A("v_and_b32 v11, 15, v0")
    A("s_cmp_eq_u32 s32, 0"); A("s_cbranch_scc0 L_noparam")
    if dmap:
        A("s_lshl_b32 s44, s34, 7"); A("s_lshl_b32 s46, s34, 5"); A("s_add_u32 s46, s46, 896")
        A("v_cmp_gt_u32 vcc, 32, v0"); A("v_mov_b32 v4, s46"); A("v_mov_b32 v12, s44"); A("v_lshlrev_b32 v1, 2, v0"); A("v_cndmask_b32 v4, v4, v12, vcc"); A("v_add_u32 v1, v4, v1")
    else:
        A("s_mul_i32 s44, s34, 160"); A("v_lshlrev_b32 v1, 2, v0"); A("v_add_u32 v1, s44, v1")
    A("s_mov_b32 exec_hi, 0xff")
    A("s_waitcnt lgkmcnt(0)")
    for pi,sp in enumerate(["s[8:9]","s[10:11]","s[12:13]","s[14:15]"]):
        A(f"global_load_dword v{92+pi}, v1, {sp}")
    A("s_mov_b64 exec, -1")
    A("L_noparam:")
    touch=opt.get('touch',0)
    tinit=opt.get('tinit',list(range(opt.get('touch0',0),touch))); tA=opt.get('tA',[])
    ntinit=len(tinit)
    if touch:
        A("s_cmp_eq_u32 s36, 1"); A("s_cbranch_scc1 L_tw")
        A("s_lshl_b32 s45, s35, 4"); A(f"v_add_u32 v{VT}, s45, v0")
        A(f"v_lshrrev_b32 v4, 3, v{VT}"); A(f"v_and_b32 v{VT}, 7, v{VT}"); A(f"v_mul_u32_u24 v{VT}, 1280, v{VT}")
        A("s_lshl_b32 s45, s34, 2"); A("v_add_u32 v4, s45, v4"); A("v_mul_u32_u24 v4, 10240, v4"); A(f"v_add_u32 v{VT}, v{VT}, v4")
        A("s_mul_i32 s45, s33, 327680"); A(f"v_add_u32 v{VT}, s45, v{VT}")
        A("v_cmp_gt_u32 vcc, 16, v0"); A("s_mov_b32 s48, 128"); A("s_mov_b32 s49, 1280")
        A("s_waitcnt lgkmcnt(0)")
        A("s_mov_b32 s20, s4"); A("s_mov_b32 s21, s5"); A("s_mov_b32 s22, 10485760")
        A("s_branch L_tj")
        A("L_tw:")
        A("s_lshr_b32 s45, s2, 3"); A("s_mul_i32 s45, s45, 60"); A("s_mul_i32 s46, s35, 30"); A("s_add_u32 s45, s45, s46")
        A(f"v_add_u32 v{VT}, s45, v0"); A(f"v_mul_u32_u24 v4, 0xcccd, v{VT}"); A("v_lshrrev_b32 v4, 19, v4")
        A(f"v_mul_u32_u24 v1, 10, v4"); A(f"v_sub_u32 v{VT}, v{VT}, v1"); A(f"v_lshlrev_b32 v{VT}, 7, v{VT}")
        A("v_lshrrev_b32 v1, 6, v4"); A("v_and_b32 v4, 63, v4"); A("v_mul_u32_u24 v1, 819200, v1"); A("v_mul_u32_u24 v4, 1280, v4")
        A(f"v_add3_u32 v{VT}, v{VT}, v1, v4")
        A("v_cmp_gt_u32 vcc, 30, v0"); A("s_mov_b32 s48, 81920"); A("s_mov_b32 s49, 819200")
        A("s_waitcnt lgkmcnt(0)")
        A("s_mov_b32 s20, s6"); A("s_mov_b32 s21, s7"); A("s_mov_b32 s22, 2457600")
        A("L_tj:")
        A("s_mov_b32 s23, 0x20000")
        A("v_mov_b32 v4, 0x7ff00000"); A(f"v_cndmask_b32 v{VT}, v4, v{VT}, vcc")
        A("s_mul_i32 s57, s84, s48")
        def tstage(st,dst):
            A(f"s_add_u32 {dst}, s84, {st}"); A(f"s_cmp_ge_u32 {dst}, 10"); A("s_cselect_b32 s46, 10, 0"); A(f"s_sub_u32 {dst}, {dst}, s46"); A(f"s_mul_i32 {dst}, {dst}, s48")
        for st in tinit:
            tstage(st,"s45")
            A(f"buffer_load_dword v{VD}, v{VT}, s[20:23], s45 offen {opt.get('tf','')}")
        tstage(touch,"s57")
    A("v_lshrrev_b32 v1, 1, v11"); A("v_xor_b32 v1, v1, v10"); A("v_lshlrev_b32 v1, 4, v1")
    A("v_lshl_add_u32 v1, v11, 7, v1")
    A("s_lshl_b32 s45, s35, 11"); A(f"s_add_u32 s45, s45, {XBASE}")
    A(f"v_add_u32 v{VXL}, s45, v1"); A(f"v_xor_b32 v{VXL+1}, 64, v{VXL}")
    A("v_lshrrev_b32 v1, 1, v10"); A("v_lshlrev_b32 v1, 4, v1"); A("v_and_b32 v4, 1, v10"); A("v_lshl_add_u32 v1, v4, 2, v1")
    A("v_bfe_u32 v4, v0, 2, 2"); A("v_add_u32 v1, v1, v4"); A("v_mul_u32_u24 v1, 160, v1")
    A("v_and_b32 v4, 3, v0"); A("v_lshl_add_u32 v1, v4, 3, v1")
    A(f"v_add_u32 v{VWE}, {WSLOT}, v1"); A(f"v_add_u32 v{VWO}, {2*WSLOT}, v1")
    A(f"v_mov_b32 v{VXA}, v1")
    A(f"v_mov_b32 v{VO5}, v1")
    for r in range(ACC,ACC+80): A(f"v_mov_b32 v{r}, 0")
    A(f"v_lshlrev_b32 v{VST}, 4, v10"); A(f"v_add_u32 v{VST}, {STB}, v{VST}")
    A("s_cmp_eq_u32 s32, 0"); A("s_cbranch_scc0 L_noparam2")
    A("s_mov_b32 exec_hi, 0xff")
    A("s_mov_b32 s52, 0x3fb8aa3b")
    A(f"s_waitcnt vmcnt({ntinit})")
    for e in range(2):
        def ex(dst,src):
            if e==0: A(f"v_lshlrev_b32 v{dst}, 16, v{src}")
            else: A(f"v_and_b32 v{dst}, 0xffff0000, v{src}")
        ex(96,93); A("v_add_f32 v96, 0x3727c5ac, v96"); A("v_rsq_f32 v96, v96")
        ex(97,94); ex(98,92); ex(99,95)
        A("v_mul_f32 v96, v96, v97"); A("v_fma_f32 v99, -v98, v96, v99")
        A(f"v_mul_f32 v{100+e}, s52, v96"); A(f"v_mul_f32 v{102+e}, s52, v99")
    A(f"v_lshlrev_b32 v1, 3, v0"); A(f"v_add_u32 v1, {STB}, v1")
    A("ds_write_b64 v1, v[100:101]"); A("ds_write_b64 v1, v[102:103] offset:320")
    A("s_mov_b64 exec, -1")
    A("L_noparam2:")
    A("s_waitcnt lgkmcnt(0)")
    A("s_mov_b32 s28, s16"); A("s_mov_b32 s29, s17"); A("s_mov_b32 s30, 10485760"); A("s_mov_b32 s31, 0x20000")
    A("s_mov_b32 s52, 0x3fb8aa3b"); A("s_mov_b32 s53, 0x3fb8aa3b")
    stamp(1)
    A("s_cmp_eq_u32 s36, 1"); A("s_cbranch_scc1 L_dh1")
    for dh in range(2):
        if dh==1: A("L_dh1:")
        if dmap: tiles=[0,1,4] if dh==0 else [2,3,4]
        else: tiles=[0,1,2] if dh==0 else [3,4,2]
        s0=0 if dh==0 else 4
        def valid(s,k): return 0<=s+k-1<=7
        mf=[]
        for ti in range(2):
            for s in range(8):
                for k in range(3):
                    if valid(s,k): mf.append((ti,s,s,k))
        for sl in range(4):
            for k in range(3):
                if valid(s0+sl,k): mf.append((2,sl,s0+sl,k))
        assert len(mf)==55
        def reads(setn,vw):
            xs=[f"ds_read_b128 {fx(setn,f)}, v{VXA} offset:{f*4096}" for f in range(8)]
            ws=[]
            for ti in range(3):
                for k in range(3):
                    for hh in range(2):
                        c,r=fwreg(setn,k,ti); r+=hh*2
                        ws.append(f"ds_read_b64_tr_b16 {c}[{r}:{r+1}], v{vw} offset:{k*5120+hh*1280+tiles[ti]*32}")
            return xs+ws
        if touch:
            pass
        A("s_barrier")
        stamp(2)
        if touch:
            for st in tA:
                tstage(st,"s45")
                A(f"buffer_load_dword v{VD}, v{VT}, s[20:23], s45 offen {opt.get('tf','')}")
        A(f"v_mov_b32 v{VXA}, v{VXL}")
        for i,r in enumerate(reads(0,VO5)):
            A(r)
            if i%10==9: A("s_waitcnt lgkmcnt(4)")
        A("s_lshl_b32 s45, s35, 4"); A("v_add_u32 v1, s45, v11"); A("v_mul_u32_u24 v1, 10240, v1")
        A("v_lshrrev_b32 v4, 1, v10"); A("v_lshl_add_u32 v1, v4, 4, v1"); A("v_and_b32 v4, 1, v10")
        A(f"v_lshl_add_u32 v{VO}, v4, 5, v1")
        if dmap:
            if dh: A(f"v_add_u32 v{VO}, 64, v{VO}")
            A("v_mul_u32_u24 v4, 1280, v4"); A("v_add_u32 v1, v1, v4")
        else:
            if dh: A(f"v_add_u32 v{VO}, 96, v{VO}")
            A("v_mul_u32_u24 v4, 1280, v4"); A("v_add3_u32 v1, v1, v4, 64")
        A(f"v_mov_b32 v{VO5}, v1")
        A("s_waitcnt lgkmcnt(0)")
        A("s_barrier")
        A("s_mov_b32 s39, 0"); A("s_mov_b32 s47, 0")
        if opt.get('pstamp',False): A("s_mov_b32 m0, 0"); A("v_mov_b32 v10, 0")
        A(f"L_loop{dh}:")
        for par in range(2):
            cur=par; nxt=1-par
            pre=[]; book=[]
            if par==0:
                pre.append(f"v_add_u32 v{VXA}, s47, v{VXL+1}")
                vw=VWE
                book=[f"v_xor_b32 v{VWE}, 0x8000, v{VWE}", f"s_add_u32 s47, s47, {XSLOT}", f"s_cmp_eq_u32 s47, {3*XSLOT}", "s_cselect_b32 s47, 0, s47"]
            else:
                pre.append(f"v_add_u32 v{VXA}, s47, v{VXL}")
                vw=VWO
                book=[f"v_xor_b32 v{VWO}, 0x8000, v{VWO}", "s_add_u32 s39, s39, 1", "s_cmp_lt_u32 s39, 10"]
            if touch and par==opt.get('tpar',0):
                book=book+[f"s_cmp_eq_u32 s39, {10-touch+(1 if par==1 else 0)}", f"s_cselect_b32 s22, 0, s22",
                      f"buffer_load_dword v{VD}, v{VT}, s[20:23], s57 offen {opt.get('tf','')}",
                      "s_add_u32 s57, s57, s48", "s_cmp_eq_u32 s57, s49", "s_cselect_b32 s57, 0, s57"]
                if par==1: book=book+["s_cmp_lt_u32 s39, 10"]
            rd=reads(nxt,vw) if opt.get('reads',True) else []
            gaps=[[] for _ in range(55)]
            gaps[0]+=pre
            g=1
            step=opt.get('rstep',1)
            for r in rd:
                gaps[g].append(r); g+=step if isinstance(step,int) else 1
            g=max(g,30)+4
            for b_ in book:
                gaps[g].append(b_); g+=1
            if opt.get('pstamp',False): A("s_memtime s[86:87]")
            for i,(ti,sl,s,k) in enumerate(mf):
                a=acc(ti,sl); f=s+k-1
                A(f"v_mfma_f32_16x16x32_bf16 v[{a}:{a+3}], {fw(cur,k,ti)}, {fx(cur,f)}, v[{a}:{a+3}]")
                for x in gaps[i]: A(x)
            A("s_waitcnt lgkmcnt(0)")
            if opt.get('pstamp',False):
                A("v_writelane_b32 v10, s86, m0"); A("s_addk_i32 m0, 1") if False else A("s_add_u32 m0, m0, 1")
                if par==1: A("s_cmp_lt_u32 s39, 10")
            A("s_barrier")
        A(f"s_cbranch_scc1 L_loop{dh}")
        stamp(3)
        Sreg=WV; Treg=WV+12; E=WV+24
        for ti in range(3):
            A(f"ds_read_b128 v[{Sreg+ti*4}:{Sreg+ti*4+3}], v{VST} offset:{tiles[ti]*64}")
            A(f"ds_read_b128 v[{Treg+ti*4}:{Treg+ti*4+3}], v{VST} offset:{320+tiles[ti]*64}")
        if dmap:
            A("s_mul_i32 s44, s33, 327680"); A("s_lshl_b32 s45, s34, 5"); A("s_add_u32 s43, s44, s45"); A("s_add_u32 s43, s43, 1024")
            A("s_lshl_b32 s45, s34, 7"); A("s_add_u32 s44, s44, s45")
        else:
            A("s_mul_i32 s44, s33, 327680"); A("s_mul_i32 s45, s34, 160"); A("s_add_u32 s44, s44, s45"); A("s_mov_b32 s43, s44")
        A("s_waitcnt lgkmcnt(0)")
        def pair(a,ta,b,tb,vo,soff,sbase="s44",sfl=sf):
            for (r,t) in ((a,ta),(b,tb)):
                for h in range(2):
                    A(f"v_pk_fma_f32 v[{r+2*h}:{r+2*h+1}], v[{r+2*h}:{r+2*h+1}], v[{Sreg+t*4+2*h}:{Sreg+t*4+2*h+1}], v[{Treg+t*4+2*h}:{Treg+t*4+2*h+1}]")
            for i,r in enumerate([a,a+1,a+2,a+3,b,b+1,b+2,b+3]):
                A(f"v_exp_f32 v{E+i}, -v{r}")
            for h in range(4):
                A(f"v_pk_fma_f32 v[{E+2*h}:{E+2*h+1}], v[{E+2*h}:{E+2*h+1}], s[52:53], s[52:53]")
            for i in range(8): A(f"v_rcp_f32 v{E+i}, v{E+i}")
            A(f"s_add_u32 s45, {sbase}, {soff}")
            for h,r in enumerate([a,a+2,b,b+2]):
                A(f"v_pk_mul_f32 v[{r}:{r+1}], v[{r}:{r+1}], v[{E+2*h}:{E+2*h+1}]")
            A(f"v_cvt_pk_bf16_f32 v{a}, v{a}, v{a+1}"); A(f"v_cvt_pk_bf16_f32 v{a+1}, v{a+2}, v{a+3}")
            A(f"v_cvt_pk_bf16_f32 v{a+2}, v{b}, v{b+1}"); A(f"v_cvt_pk_bf16_f32 v{a+3}, v{b+2}, v{b+3}")
            A("s_nop 1")
            A(f"v_permlane16_swap_b32 v{a}, v{a+2}"); A(f"v_permlane16_swap_b32 v{a+1}, v{a+3}")
            if not opt.get('nostore',False): A(f"buffer_store_dwordx4 v[{a}:{a+3}], v{vo}, s[28:31], s45 offen {sfl}")
        for s in range(8):
            pair(acc(0,s),0,acc(1,s),1,VO,s*1280)
        for sp in range(2):
            pair(acc(2,2*sp),2,acc(2,2*sp+1),2,VO5,(s0+2*sp)*1280,"s43",opt.get('sf5',sf))
        if stamps:
            stamp(4)
            A("s_waitcnt vmcnt(0)")
            stamp(5)
            A("s_waitcnt lgkmcnt(0)")
            A(f"s_cmp_eq_u32 s32, {opt.get('stampwave',0)}"); A("s_cbranch_scc0 L_end")
            A("v_mov_b32 v1, 0")
            if stamps=='dbg':
                A(f"s_cmp_eq_u32 s2, {opt.get('dbgwg',77)}"); A("s_cbranch_scc0 L_end")
                A("s_mov_b64 exec, 1")
                for k in range(5):
                    a=60+4*k
                    A(f"s_sub_u32 s44, s{a+4}, s{a}"); A(f"s_sub_u32 s45, s{a+6}, s{a+2}")
                    A("v_mov_b32 v2, s44"); A("v_mov_b32 v3, s45"); A(f"global_store_dwordx2 v1, v[2:3], s[18:19] offset:{k*8}"); A("s_nop 1")
            else:
                if opt.get('pstamp',False):
                    A("v_writelane_b32 v10, s74, m0")
                    A("s_lshl_b32 s44, s2, 8"); A("s_add_u32 s44, s44, 65536"); A("v_lshlrev_b32 v4, 2, v0"); A("v_add_u32 v4, s44, v4")
                    A("global_store_dword v4, v10, s[18:19]")
                A("s_mul_i32 s44, s2, 96"); A("s_add_u32 s18, s18, s44"); A("s_addc_u32 s19, s19, 0")
                for k,a in enumerate(range(60,84,2)):
                    A(f"v_mov_b32 v2, s{a}"); A(f"v_mov_b32 v3, s{a+1}"); A(f"global_store_dwordx2 v1, v[2:3], s[18:19] offset:{k*8}"); A("s_nop 1")
        if dh==0: A("s_endpgm")
    A("L_end:"); A("s_endpgm")
    A('.section .rodata,"a"'); A(".p2align 6"); A(f".amdhsa_kernel {NAME}")
    A(f"  .amdhsa_next_free_vgpr {NV+NA}"); A("  .amdhsa_next_free_sgpr 96"); A(f"  .amdhsa_accum_offset {NV}")
    A("  .amdhsa_group_segment_fixed_size 0"); A("  .amdhsa_kernarg_size 72"); A("  .amdhsa_user_sgpr_count 2")
    A("  .amdhsa_user_sgpr_kernarg_segment_ptr 1"); A("  .amdhsa_system_sgpr_workgroup_id_x 1"); A(".end_amdhsa_kernel")
    return "\n".join(L)+"\n"
if __name__=="__main__":
    opt={}
    for a in sys.argv[2:]:
        k,v=a.split('=',1); opt[k]=eval(v)
    open(sys.argv[1],"w").write(gen(opt))
```

```python
import sys
NAME="standalone__batchnorm__sampling_kernel"
HEADER=open('standalone__batchnorm__sampling.s.ref').read().split('; Override launch')[0]

WSLOT=16384; XBASE=65536; XSLOT=32768; LDS_BYTES=163840; STB=15424
VXL=2; VXA=4; VWE=5; VWO=6; VO=7; VO5=8; VST=9
ACC=12; WV=92; VT=128; VD=129
SR=130; TR=138; E=146
NV=156; NA=100
def acc(ti,s): return ACC+((ti*8+s)*4)
def fx(setn,f): return f"a[{setn*68+f*4}:{setn*68+f*4+3}]"
def fwreg(setn,k,ti):
    idx=(ti*3+k)*4
    return ('a',32+idx) if setn==0 else ('v',WV+idx)
def fw(setn,k,ti):
    c,r=fwreg(setn,k,ti); return f"{c}[{r}:{r+3}]"

def gen(opt):
    L=[]; A=L.append
    stamps=opt.get('stamps',False)
    xf=opt.get('xf',''); wf=opt.get('wf',''); sf=opt.get('sf','sc1'); sf5=opt.get('sf5','')
    touch=opt.get('touch',3); tinit=opt.get('tinit',[1,2]); tA=opt.get('tA',[]); tf=opt.get('tf','')
    def stamp(k):
        if stamps: A(f"s_memrealtime s[{60+4*k}:{61+4*k}]"); A(f"s_memtime s[{62+4*k}:{63+4*k}]")
    A(HEADER.rstrip())
    A(f"; @launch grid=(256,1,1) block=(512,1,1) lds={LDS_BYTES}")
    A('.amdgcn_target "amdgcn-amd-amdhsa--gfx950"')
    A(".text"); A(f".globl {NAME}"); A(".p2align 8"); A(f".type {NAME},@function"); A(f"{NAME}:")
    A("s_cmp_ge_u32 s2, 256"); A("s_cbranch_scc1 L_end")
    stamp(0)
    A("s_load_dwordx4 s[4:7], s[0:1], 0")
    A("v_lshrrev_b32 v1, 6, v0"); A("v_and_b32 v0, 63, v0")
    A("s_and_b32 s33, s2, 7"); A("v_readfirstlane_b32 s32, v1")
    A("s_lshr_b32 s34, s2, 3"); A("s_lshr_b32 s35, s34, 3"); A("s_and_b32 s34, s34, 7")
    if opt.get('rot',True):
        A("s_mul_i32 s84, s33, 5"); A("s_lshr_b32 s84, s84, 2")
    else: A("s_mov_b32 s84, 0")
    A("s_lshl_b32 s33, s33, 2"); A("s_add_u32 s33, s33, s35")
    A("s_cmp_lt_u32 s32, 4"); A("s_cbranch_scc1 L_compute")
    VX=8; VW=12
    A("s_sub_u32 s32, s32, 4")
    A("v_lshrrev_b32 v2, 4, v0"); A("v_lshrrev_b32 v5, 3, v0")
    A("v_and_b32 v6, 7, v0"); A("v_xor_b32 v6, v6, v2")
    A("v_mul_u32_u24 v5, 10240, v5")
    A("v_lshlrev_b32 v7, 4, v6"); A("v_xor_b32 v6, 4, v6"); A("v_lshlrev_b32 v6, 4, v6")
    A(f"v_add_u32 v{VX}, v5, v7")
    A(f"v_add_u32 v{VX+1}, v5, v6"); A(f"v_add_u32 v{VX+1}, {81920-1024}, v{VX+1}")
    A(f"v_add_u32 v{VX+2}, {2*(81920-1024)}, v{VX}")
    A(f"v_add_u32 v{VX+3}, {2*(81920-1024)}, v{VX+1}")
    A("s_mul_i32 s37, s33, 327680"); A("s_mul_i32 s45, s32, 1280"); A("s_add_u32 s37, s37, s45")
    A("s_add_u32 s59, s37, 5120")
    A("s_lshl_b32 s40, s32, 12"); A(f"s_add_u32 s40, s40, {XBASE}"); A("s_add_u32 s41, s40, 16384")
    A("s_mul_i32 s42, s32, 3840")
    A("s_lshl_b32 s58, s84, 7"); A("s_mul_i32 s38, s84, 81920")
    A("s_mov_b32 s22, 10485760"); A("s_mov_b32 s23, 0x20000"); A("s_mov_b32 s26, 2457600"); A("s_mov_b32 s27, 0x20000")
    def adv_x(): A("s_add_u32 s58, s58, 128"); A("s_cmp_eq_u32 s58, 1280"); A("s_cselect_b32 s58, 0, s58")
    def adv_w(): A("s_add_u32 s38, s38, 40960"); A("s_cmp_eq_u32 s38, 819200"); A("s_cselect_b32 s38, 0, s38")
    def dma_x(slotoff, h):
        A(f"s_add_u32 m0, s{40+h}, {slotoff}")
        A(f"s_add_u32 s56, s{59 if h else 37}, s58")
        for jj in range(4):
            A(f"buffer_load_dwordx4 v{VX+jj}, s[20:23], s56 offen offset:{jj*1024} {xf} lds")
    def dma_w(slotoff):
        A(f"s_add_u32 m0, s42, {slotoff}")
        A("s_nop 0")
        for jj in range(4):
            A(f"buffer_load_dwordx4 v{VW+jj}, s[24:27], s38 offen offset:{jj*960} {wf} lds")
        adv_w()
    def w_addr():
        A("s_lshl_b32 s44, s34, 7"); A("s_lshl_b32 s46, s34, 5"); A("s_add_u32 s46, s46, 896"); A("s_mul_i32 s45, s32, 240")
        A("v_mov_b32 v19, s46"); A("v_mov_b32 v20, s44")
        for jj in range(4):
            A(f"v_add_u32 v5, s45, v0")
            if jj: A(f"v_add_u32 v5, {60*jj}, v5")
            A("v_mul_u32_u24 v6, 0xcccd, v5"); A("v_lshrrev_b32 v6, 19, v6")
            A("v_mul_u32_u24 v7, 10, v6"); A("v_sub_u32 v7, v5, v7")
            A("v_cmp_gt_u32 vcc, 8, v7")
            A("v_min_u32 v6, 95, v6")
            A("v_lshrrev_b32 v16, 5, v6"); A("v_and_b32 v6, 31, v6")
            A("v_and_b32 v17, 4, v6"); A("v_lshlrev_b32 v17, 1, v17"); A("v_and_b32 v18, 8, v6"); A("v_lshrrev_b32 v18, 1, v18")
            A("v_and_b32 v6, 0x13, v6"); A("v_or3_b32 v6, v6, v17, v18")
            A("v_mul_u32_u24 v16, 819200, v16"); A("v_mul_u32_u24 v6, 1280, v6")
            A("v_lshl_add_u32 v6, v7, 4, v6"); A("v_cndmask_b32 v17, v19, v20, vcc"); A("v_add3_u32 v6, v6, v16, v17")
            if jj: A(f"v_subrev_u32 v{VW+jj}, {960*jj}, v6")
            else: A(f"v_mov_b32 v{VW}, v6")
    xfirst=opt.get('xfirst',True)
    if not xfirst: w_addr()
    A("s_waitcnt lgkmcnt(0)")
    A("s_mov_b32 s20, s4"); A("s_mov_b32 s21, s5"); A("s_mov_b32 s24, s6"); A("s_mov_b32 s25, s7")
    dma_x(0,0); dma_x(0,1); adv_x()
    if xfirst: w_addr()
    dma_w(0); dma_w(WSLOT)
    dma_x(XSLOT,0)
    dma_w(2*WSLOT)
    A("s_waitcnt vmcnt(12)"); A("s_barrier")
    dma_x(XSLOT,1); adv_x()
    dma_w(3*WSLOT)
    A("s_waitcnt vmcnt(16)"); A("s_barrier")
    dma_x(2*XSLOT,0)
    A(f"s_mov_b32 s47, {2*XSLOT}"); A("s_mov_b32 s55, 0"); A("s_mov_b32 s39, 0")
    A("L_ldloop:")
    dma_w("s55"); A(f"s_add_u32 s55, s55, {WSLOT}")
    dma_x("s47",1); adv_x()
    A(f"s_add_u32 s47, s47, {XSLOT}"); A(f"s_cmp_eq_u32 s47, {3*XSLOT}"); A("s_cselect_b32 s47, 0, s47")
    A("s_waitcnt vmcnt(16)"); A("s_barrier")
    dma_w("s55"); A(f"s_add_u32 s55, s55, {WSLOT}"); A(f"s_and_b32 s55, s55, {4*WSLOT-1}")
    dma_x("s47",0)
    A("s_add_u32 s39, s39, 1"); A("s_cmp_lt_u32 s39, 7")
    A("s_waitcnt vmcnt(16)"); A("s_barrier")
    A("s_cbranch_scc1 L_ldloop")
    dma_w("s55"); A(f"s_add_u32 s55, s55, {WSLOT}")
    dma_x("s47",1)
    A("s_waitcnt vmcnt(16)"); A("s_barrier")
    dma_w("s55")
    A("s_waitcnt vmcnt(12)"); A("s_barrier")
    A("s_waitcnt vmcnt(4)"); A("s_barrier")
    A("s_waitcnt vmcnt(0)"); A("s_barrier")
    A("s_endpgm")
    A("L_compute:")
    A("s_load_dwordx4 s[8:11], s[0:1], 16")
    A("s_load_dwordx4 s[12:15], s[0:1], 32")
    A("s_load_dwordx2 s[16:17], s[0:1], 48")
    if stamps: A(f"s_load_dwordx2 s[18:19], s[0:1], {56 if stamps=='dbg' else 64}")
    A("s_lshr_b32 s35, s32, 1"); A("s_and_b32 s36, s32, 1")
    A("v_lshrrev_b32 v10, 4, v0"); A("v_and_b32 v11, 15, v0")
    A("s_cmp_eq_u32 s32, 0"); A("s_cbranch_scc0 L_noparam")
    A("s_lshl_b32 s44, s34, 7"); A("s_lshl_b32 s46, s34, 5"); A("s_add_u32 s46, s46, 896")
    A("v_cmp_gt_u32 vcc, 32, v0"); A("v_mov_b32 v4, s46"); A("v_mov_b32 v12, s44"); A("v_lshlrev_b32 v1, 2, v0"); A("v_cndmask_b32 v4, v4, v12, vcc"); A("v_add_u32 v1, v4, v1")
    A("s_mov_b32 exec_hi, 0xff")
    A("s_waitcnt lgkmcnt(0)")
    for pi,sp in enumerate(["s[8:9]","s[10:11]","s[12:13]","s[14:15]"]):
        A(f"global_load_dword v{92+pi}, v1, {sp}")
    A("s_mov_b64 exec, -1")
    A("L_noparam:")
    ntinit=0
    if touch:
        ntinit=len(tinit)
        A("s_cmp_eq_u32 s36, 1"); A("s_cbranch_scc1 L_tw")
        A("s_lshl_b32 s45, s35, 4"); A(f"v_add_u32 v{VT}, s45, v0")
        A(f"v_lshrrev_b32 v4, 3, v{VT}"); A(f"v_and_b32 v{VT}, 7, v{VT}"); A(f"v_mul_u32_u24 v{VT}, 1280, v{VT}")
        A("s_lshl_b32 s45, s34, 2"); A("v_add_u32 v4, s45, v4"); A("v_mul_u32_u24 v4, 10240, v4"); A(f"v_add_u32 v{VT}, v{VT}, v4")
        A("s_mul_i32 s45, s33, 327680"); A(f"v_add_u32 v{VT}, s45, v{VT}")
        A("v_cmp_gt_u32 vcc, 16, v0"); A("s_mov_b32 s48, 128"); A("s_mov_b32 s49, 1280")
        A("s_waitcnt lgkmcnt(0)")
        A("s_mov_b32 s20, s4"); A("s_mov_b32 s21, s5"); A("s_mov_b32 s22, 10485760")
        A("s_branch L_tj")
        A("L_tw:")
        A("s_lshr_b32 s45, s2, 3"); A("s_mul_i32 s45, s45, 60"); A("s_mul_i32 s46, s35, 30"); A("s_add_u32 s45, s45, s46")
        A(f"v_add_u32 v{VT}, s45, v0"); A(f"v_mul_u32_u24 v4, 0xcccd, v{VT}"); A("v_lshrrev_b32 v4, 19, v4")
        A(f"v_mul_u32_u24 v1, 10, v4"); A(f"v_sub_u32 v{VT}, v{VT}, v1"); A(f"v_lshlrev_b32 v{VT}, 7, v{VT}")
        A("v_lshrrev_b32 v1, 6, v4"); A("v_and_b32 v4, 63, v4"); A("v_mul_u32_u24 v1, 819200, v1"); A("v_mul_u32_u24 v4, 1280, v4")
        A(f"v_add3_u32 v{VT}, v{VT}, v1, v4")
        A("v_cmp_gt_u32 vcc, 30, v0"); A("s_mov_b32 s48, 81920"); A("s_mov_b32 s49, 819200")
        A("s_waitcnt lgkmcnt(0)")
        A("s_mov_b32 s20, s6"); A("s_mov_b32 s21, s7"); A("s_mov_b32 s22, 2457600")
        A("L_tj:")
        A("s_mov_b32 s23, 0x20000")
        A("v_mov_b32 v4, 0x7ff00000"); A(f"v_cndmask_b32 v{VT}, v4, v{VT}, vcc")
        def tstage(st,dst):
            A(f"s_add_u32 {dst}, s84, {st}"); A(f"s_cmp_ge_u32 {dst}, 10"); A("s_cselect_b32 s46, 10, 0"); A(f"s_sub_u32 {dst}, {dst}, s46"); A(f"s_mul_i32 {dst}, {dst}, s48")
        for st in tinit:
            tstage(st,"s45")
            A(f"buffer_load_dword v{VD}, v{VT}, s[20:23], s45 offen {tf}")
        tstage(touch,"s57")
    A("v_lshrrev_b32 v1, 1, v11"); A("v_xor_b32 v1, v1, v10"); A("v_lshlrev_b32 v1, 4, v1")
    A("v_lshl_add_u32 v1, v11, 7, v1")
    A("s_lshl_b32 s45, s35, 11"); A(f"s_add_u32 s45, s45, {XBASE}")
    A(f"v_add_u32 v{VXL}, s45, v1"); A(f"v_xor_b32 v{VXL+1}, 64, v{VXL}")
    A("v_lshrrev_b32 v1, 1, v10"); A("v_lshlrev_b32 v1, 4, v1"); A("v_and_b32 v4, 1, v10"); A("v_lshl_add_u32 v1, v4, 2, v1")
    A("v_bfe_u32 v4, v0, 2, 2"); A("v_add_u32 v1, v1, v4"); A("v_mul_u32_u24 v1, 160, v1")
    A("v_and_b32 v4, 3, v0"); A("v_lshl_add_u32 v1, v4, 3, v1")
    A(f"v_add_u32 v{VWE}, {WSLOT}, v1"); A(f"v_add_u32 v{VWO}, {2*WSLOT}, v1")
    A(f"v_mov_b32 v{VO5}, v1")
    for r in range(ACC,ACC+80): A(f"v_mov_b32 v{r}, 0")
    A(f"v_lshlrev_b32 v{VST}, 4, v10"); A(f"v_add_u32 v{VST}, {STB}, v{VST}")
    A("s_cmp_eq_u32 s32, 0"); A("s_cbranch_scc0 L_noparam2")
    A("s_mov_b32 exec_hi, 0xff")
    A("s_mov_b32 s52, 0xbfb8aa3b")
    A(f"s_waitcnt vmcnt({ntinit})")
    for e in range(2):
        def ex(dst,src):
            if e==0: A(f"v_lshlrev_b32 v{dst}, 16, v{src}")
            else: A(f"v_and_b32 v{dst}, 0xffff0000, v{src}")
        ex(96,93); A("v_add_f32 v96, 0x3727c5ac, v96"); A("v_rsq_f32 v96, v96")
        ex(97,94); ex(98,92); ex(99,95)
        A("v_mul_f32 v96, v96, v97"); A("v_fma_f32 v99, -v98, v96, v99")
        A(f"v_mul_f32 v{100+e}, s52, v96"); A(f"v_mul_f32 v{102+e}, s52, v99")
    A(f"v_lshlrev_b32 v1, 3, v0"); A(f"v_add_u32 v1, {STB}, v1")
    A("ds_write_b64 v1, v[100:101]"); A("ds_write_b64 v1, v[102:103] offset:320")
    A("s_mov_b64 exec, -1")
    A("L_noparam2:")
    A("s_waitcnt lgkmcnt(0)")
    A("s_mov_b32 s28, s16"); A("s_mov_b32 s29, s17"); A("s_mov_b32 s30, 10485760"); A("s_mov_b32 s31, 0x20000")
    A("s_mov_b32 s52, 0x3fb8aa3b"); A("s_mov_b32 s53, 0x3fb8aa3b")
    stamp(1)
    A("s_cmp_eq_u32 s36, 1"); A("s_cbranch_scc1 L_dh1")
    for dh in range(2):
        if dh==1: A("L_dh1:")
        tiles=[0,1,4] if dh==0 else [2,3,4]
        s0=0 if dh==0 else 4
        def valid(s,k): return 0<=s+k-1<=7
        def grp(ti,sl):
            s=sl if ti<2 else s0+sl
            return [(ti,sl,s,k) for k in range(3) if valid(s,k)]
        mf=[m for ti in range(2) for s in range(8) for m in grp(ti,s)]+[m for sl in range(4) for m in grp(2,sl)]
        assert len(mf)==55
        def mfma(setn,m):
            ti,sl,s,k=m; a=acc(ti,sl)
            return f"v_mfma_f32_16x16x32_bf16 v[{a}:{a+3}], {fw(setn,k,ti)}, {fx(setn,s+k-1)}, v[{a}:{a+3}]"
        def reads(setn,vw):
            xs=[f"ds_read_b128 {fx(setn,f)}, v{VXA} offset:{f*4096}" for f in range(8)]
            ws=[]
            for ti in range(3):
                for k in range(3):
                    for hh in range(2):
                        c,r=fwreg(setn,k,ti); r+=hh*2
                        ws.append(f"ds_read_b64_tr_b16 {c}[{r}:{r+1}], v{vw} offset:{k*5120+hh*1280+tiles[ti]*32}")
            return xs+ws
        A("s_barrier")
        stamp(2)
        if touch:
            for st in tA:
                tstage(st,"s45")
                A(f"buffer_load_dword v{VD}, v{VT}, s[20:23], s45 offen {tf}")
        A(f"v_mov_b32 v{VXA}, v{VXL}")
        for i,r in enumerate(reads(0,VO5)):
            A(r)
            if i%10==9: A("s_waitcnt lgkmcnt(4)")
        A("s_lshl_b32 s45, s35, 4"); A("v_add_u32 v1, s45, v11"); A("v_mul_u32_u24 v1, 10240, v1")
        A("v_lshrrev_b32 v4, 1, v10"); A("v_lshl_add_u32 v1, v4, 4, v1"); A("v_and_b32 v4, 1, v10")
        A(f"v_lshl_add_u32 v{VO}, v4, 5, v1")
        if dh: A(f"v_add_u32 v{VO}, 64, v{VO}")
        A("v_mul_u32_u24 v4, 1280, v4"); A(f"v_add_u32 v{VO5}, v1, v4")
        A("s_mul_i32 s44, s33, 327680"); A("s_lshl_b32 s45, s34, 5"); A("s_add_u32 s43, s44, s45"); A("s_add_u32 s43, s43, 1024")
        A("s_lshl_b32 s45, s34, 7"); A("s_add_u32 s44, s44, s45")
        A("s_waitcnt lgkmcnt(0)")
        A("s_barrier")
        A("s_mov_b32 s39, 0"); A("s_mov_b32 s47, 0")
        if opt.get('pstamp',False): A("s_mov_b32 m0, 0"); A("v_mov_b32 v10, 0")
        A(f"L_loop{dh}:")
        for par in range(2):
            cur=par; nxt=1-par
            pre=[]; book=[]
            if par==0:
                pre.append(f"v_add_u32 v{VXA}, s47, v{VXL+1}")
                vw=VWE
                book=[f"v_xor_b32 v{VWE}, 0x8000, v{VWE}", f"s_add_u32 s47, s47, {XSLOT}", f"s_cmp_eq_u32 s47, {3*XSLOT}", "s_cselect_b32 s47, 0, s47"]
                if touch:
                    book=book+[f"s_cmp_eq_u32 s39, {10-touch}", f"s_cselect_b32 s22, 0, s22",
                      f"buffer_load_dword v{VD}, v{VT}, s[20:23], s57 offen {tf}",
                      "s_add_u32 s57, s57, s48", "s_cmp_eq_u32 s57, s49", "s_cselect_b32 s57, 0, s57"]
            else:
                pre.append(f"v_add_u32 v{VXA}, s47, v{VXL}")
                vw=VWO
                book=[f"v_xor_b32 v{VWO}, 0x8000, v{VWO}", "s_add_u32 s39, s39, 1", "s_cmp_lt_u32 s39, 9"]
            rd=reads(nxt,vw)
            gaps=[[] for _ in range(55)]
            gaps[0]+=pre
            g=1
            for r in rd:
                gaps[g].append(r); g+=1
            g=max(g,30)+4
            for b_ in book:
                gaps[g].append(b_); g+=1
            if opt.get('pstamp',False): A("s_memtime s[86:87]")
            for i,m in enumerate(mf):
                A(mfma(cur,m))
                for x in gaps[i]: A(x)
            A("s_waitcnt lgkmcnt(0)")
            if opt.get('pstamp',False):
                A("v_writelane_b32 v10, s86, m0"); A("s_add_u32 m0, m0, 1")
                if par==1: A("s_cmp_lt_u32 s39, 9")
            A("s_barrier")
        A(f"s_cbranch_scc1 L_loop{dh}")
        stamp(3)
        def K(setn,ti_list,sl): return [mfma(setn,m) for ti in ti_list for m in grp(ti,sl)]
        K18=lambda s: K(0,(0,1),s)
        K19=lambda s: K(1,(0,1),s)
        T18=lambda sl: K(0,(2,),sl)
        T19=lambda sl: K(1,(2,),sl)
        ph1=K18(0)+K18(1)+K18(2)+K18(3)+K18(4)
        rd=[f"v_add_u32 v{VXA}, s47, v{VXL+1}"]+reads(1,VWE)
        st=[]
        for ti in range(2):
            st.append(f"ds_read_b128 v[{SR+ti*4}:{SR+ti*4+3}], v{VST} offset:{tiles[ti]*64}")
            st.append(f"ds_read_b128 v[{TR+ti*4}:{TR+ti*4+3}], v{VST} offset:{320+tiles[ti]*64}")
        rd=rd+st
        per=[2 if i<(len(rd)-len(ph1)+6) else 1 for i in range(len(ph1))]
        ri=0
        for i,m in enumerate(ph1):
            A(m)
            for _ in range(per[i]):
                if ri<len(rd): A(rd[ri]); ri+=1
        assert ri==len(rd)
        A("s_waitcnt lgkmcnt(0)")
        for m in K19(0): A(m)
        slots=[K19(1)+K18(5)[:3], K19(2)+K18(5)[3:], K19(3)+K18(6)[:3], K19(4)+K18(6)[3:],
               K19(5)+K18(7)[:2], K19(6)+K18(7)[2:], K19(7)+T18(0)+T18(1), T19(0)+T19(1)+T18(2),
               T19(2)+T18(3)+T19(3), []]
        assert sum(len(x) for x in slots)+len(ph1)+len(K19(0))==110
        S4=acc(1,0); T4=acc(1,1)
        def epi_head(a,Sa,Ta,b,Sb,Tb):
            o=[]
            for (r,S,T) in ((a,Sa,Ta),(b,Sb,Tb)):
                for h in range(2):
                    o.append(f"v_pk_fma_f32 v[{r+2*h}:{r+2*h+1}], v[{r+2*h}:{r+2*h+1}], v[{S+2*h}:{S+2*h+1}], v[{T+2*h}:{T+2*h+1}]")
            return o
        def epi_body(a,b,mfl,extra,pend=None):
            o=[]
            tr=[f"v_exp_f32 v{E+i}, v{r}" for i,r in enumerate([a,a+1,a+2,a+3,b,b+1,b+2,b+3])]
            mid=[f"v_pk_fma_f32 v[{E+2*h}:{E+2*h+1}], v[{E+2*h}:{E+2*h+1}], s[52:53], s[52:53]" for h in range(4)]
            tr2=[f"v_rcp_f32 v{E+i}, v{E+i}" for i in range(8)]
            mfl=list(mfl) if not opt.get('nomf',False) else []
            n=len(mfl)
            pos=sorted(opt.get('mpos',[0,2,4,8,10,12,1,9,3,11,5,13,6,14])[:n])
            mi=0
            for i,t in enumerate(tr+tr2):
                if i==8: o+=mid
                if i in pos: o.append(mfl[mi]); mi+=1
                o.append(t)
                if pend and i==opt.get('spos',5): o.append(pend)
            o+=extra
            for h,r in enumerate([a,a+2,b,b+2]):
                o.append(f"v_pk_mul_f32 v[{r}:{r+1}], v[{r}:{r+1}], v[{E+2*h}:{E+2*h+1}] neg_lo:[1,0] neg_hi:[1,0]")
            o.append(f"v_cvt_pk_bf16_f32 v{a}, v{a}, v{a+1}"); o.append(f"v_cvt_pk_bf16_f32 v{a+1}, v{a+2}, v{a+3}")
            o.append(f"v_cvt_pk_bf16_f32 v{a+2}, v{b}, v{b+1}"); o.append(f"v_cvt_pk_bf16_f32 v{a+3}, v{b+2}, v{b+3}")
            return o
        def epi_tail(a,vo,sfl,sreg):
            o=[f"v_permlane16_swap_b32 v{a}, v{a+2}", f"v_permlane16_swap_b32 v{a+1}, v{a+3}"]
            if not opt.get('nostore',False): o.append(f"buffer_store_dwordx4 v[{a}:{a+3}], v{vo}, s[28:31], s{sreg} offen {sfl}")
            return o
        items=[(acc(0,s),SR,TR,acc(1,s),SR+4,TR+4,VO,s*1280,"s44",sf) for s in range(8)]
        items+=[(acc(2,2*sp),S4,T4,acc(2,2*sp+1),S4,T4,VO5,(s0+2*sp)*1280,"s43",sf5) for sp in range(2)]
        A("s_nop 3"); A("s_nop 3")
        for x in epi_head(*items[0][:6]): A(x)
        pend=None
        for i,it in enumerate(items):
            a,Sa,Ta,b,Sb,Tb,vo,soff,sbase,sfl=it
            extra=[]
            if i==2:
                extra=[f"ds_read_b128 v[{S4}:{S4+3}], v{VST} offset:{4*64}", f"ds_read_b128 v[{T4}:{T4+3}], v{VST} offset:{320+4*64}"]
            for x in epi_body(a,b,slots[i],extra+[f"s_add_u32 s{45+(i&1)}, {sbase}, {soff}"],pend): A(x)
            pend=None
            if i==7: A("s_waitcnt lgkmcnt(0)")
            if i+1<len(items):
                for x in epi_head(*items[i+1][:6]): A(x)
            else: A("s_nop 1")
            tl=epi_tail(a,vo,sfl,45+(i&1))
            if opt.get('spos',5)>=0 and i+1<len(items) and not opt.get('nostore',False):
                pend=tl.pop()
            for x in tl: A(x)
        if stamps:
            stamp(4)
            A("s_waitcnt vmcnt(0)")
            stamp(5)
            A("s_waitcnt lgkmcnt(0)")
            A(f"s_cmp_eq_u32 s32, {opt.get('stampwave',0)}"); A("s_cbranch_scc0 L_end")
            A("v_mov_b32 v1, 0")
            if stamps=='dbg':
                A(f"s_cmp_eq_u32 s2, {opt.get('dbgwg',77)}"); A("s_cbranch_scc0 L_end")
                A("s_mov_b64 exec, 1")
                for k in range(5):
                    a=60+4*k
                    A(f"s_sub_u32 s44, s{a+4}, s{a}"); A(f"s_sub_u32 s45, s{a+6}, s{a+2}")
                    A("v_mov_b32 v2, s44"); A("v_mov_b32 v3, s45"); A(f"global_store_dwordx2 v1, v[2:3], s[18:19] offset:{k*8}"); A("s_nop 1")
            else:
                if opt.get('pstamp',False):
                    A("v_writelane_b32 v10, s74, m0")
                    A("s_lshl_b32 s44, s2, 8"); A("s_add_u32 s44, s44, 65536"); A("v_lshlrev_b32 v4, 2, v0"); A("v_add_u32 v4, s44, v4")
                    A("global_store_dword v4, v10, s[18:19]")
                A("s_mul_i32 s44, s2, 96"); A("s_add_u32 s18, s18, s44"); A("s_addc_u32 s19, s19, 0")
                for k,a in enumerate(range(60,84,2)):
                    A(f"v_mov_b32 v2, s{a}"); A(f"v_mov_b32 v3, s{a+1}"); A(f"global_store_dwordx2 v1, v[2:3], s[18:19] offset:{k*8}"); A("s_nop 1")
        if dh==0: A("s_endpgm")
    A("L_end:"); A("s_endpgm")
    A('.section .rodata,"a"'); A(".p2align 6"); A(f".amdhsa_kernel {NAME}")
    A(f"  .amdhsa_next_free_vgpr {NV+NA}"); A("  .amdhsa_next_free_sgpr 96"); A(f"  .amdhsa_accum_offset {NV}")
    A("  .amdhsa_group_segment_fixed_size 0"); A("  .amdhsa_kernarg_size 72"); A("  .amdhsa_user_sgpr_count 2")
    A("  .amdhsa_user_sgpr_kernarg_segment_ptr 1"); A("  .amdhsa_system_sgpr_workgroup_id_x 1"); A(".end_amdhsa_kernel")
    return "\n".join(L)+"\n"
if __name__=="__main__":
    opt={}
    for a in sys.argv[2:]:
        k,v=a.split('=',1); opt[k]=eval(v)
    open(sys.argv[1],"w").write(gen(opt))
```

```python
import sys
NAME="standalone__batchnorm__sampling_kernel"
HEADER=open('standalone__batchnorm__sampling.s.ref').read().split('; Override launch')[0]

WSLOT=16384; XBASE=65536; XSLOT=32768; LDS_BYTES=163840; STB=15424
VXL=2; VXA=4; VWE=5; VWO=6; VO=7; VO5=8; VST=9
ACC=12; WV=92; VT=128; VD=129
SR=130; TR=138; E=146
FL=31808; FC=FL+128; FSCR=FL+256
VF=130; VFA=131; VCA=132; VCI=133; VONE=134
NV=156; NA=100
def acc(ti,s): return ACC+((ti*8+s)*4)
def fx(setn,f): return f"a[{setn*68+f*4}:{setn*68+f*4+3}]"
def fwreg(setn,k,ti):
    idx=(ti*3+k)*4
    return ('a',32+idx) if setn==0 else ('v',WV+idx)
def fw(setn,k,ti):
    c,r=fwreg(setn,k,ti); return f"{c}[{r}:{r+3}]"

def gen(opt):
    L=[]; A=L.append
    stamps=opt.get('stamps',False)
    xf=opt.get('xf',''); wf=opt.get('wf',''); sf=opt.get('sf','sc1'); sf5=opt.get('sf5','')
    touch=opt.get('touch',3); tinit=opt.get('tinit',[1,2]); tA=opt.get('tA',[]); tf=opt.get('tf','')
    def stamp(k):
        if stamps: A(f"s_memrealtime s[{60+4*k}:{61+4*k}]"); A(f"s_memtime s[{62+4*k}:{63+4*k}]")
    A(HEADER.rstrip())
    A(f"; @launch grid=(256,1,1) block=(512,1,1) lds={LDS_BYTES}")
    A('.amdgcn_target "amdgcn-amd-amdhsa--gfx950"')
    A(".text"); A(f".globl {NAME}"); A(".p2align 8"); A(f".type {NAME},@function"); A(f"{NAME}:")
    A("s_cmp_ge_u32 s2, 256"); A("s_cbranch_scc1 L_end")
    stamp(0)
    A("s_load_dwordx4 s[4:7], s[0:1], 0")
    if opt.get('ctouch',0)==2:
        A("s_getpc_b64 s[54:55]"); A("L_pc:")
        A("v_lshrrev_b32 v1, 6, v0"); A("v_and_b32 v2, 63, v0"); A("v_lshl_add_u32 v3, v1, 4, v2"); A("v_lshlrev_b32 v3, 7, v3")
        A(f"s_sub_u32 s54, s54, L_pc-{NAME}"); A("s_subb_u32 s55, s55, 0")
        A(f"v_cmp_gt_u32 vcc, 16, v2"); A(f"v_cmp_gt_u32 s[56:57], s58, v3") if False else None
        A(f"v_min_u32 v3, L_end-{NAME}, v3")
        A("s_and_saveexec_b64 s[56:57], vcc")
        A(f"global_load_dword v{VD}, v3, s[54:55]")
        A("s_mov_b64 exec, -1")
    A("v_lshrrev_b32 v1, 6, v0"); A("v_and_b32 v0, 63, v0")
    A("s_and_b32 s33, s2, 7"); A("v_readfirstlane_b32 s32, v1")
    A("s_lshr_b32 s34, s2, 3"); A("s_lshr_b32 s35, s34, 3"); A("s_and_b32 s34, s34, 7")
    if opt.get('rot',True):
        A("s_mul_i32 s84, s33, 5"); A("s_lshr_b32 s84, s84, 2")
    else: A("s_mov_b32 s84, 0")
    A("s_lshl_b32 s33, s33, 2"); A("s_add_u32 s33, s33, s35")
    A("s_cmp_lt_u32 s32, 4"); A("s_cbranch_scc1 L_compute")
    VX=8; VW=12
    A("s_sub_u32 s32, s32, 4")
    A("v_lshrrev_b32 v2, 4, v0"); A("v_lshrrev_b32 v5, 3, v0")
    A("v_and_b32 v6, 7, v0"); A("v_xor_b32 v6, v6, v2")
    A("v_mul_u32_u24 v5, 10240, v5")
    A("v_lshlrev_b32 v7, 4, v6"); A("v_xor_b32 v6, 4, v6"); A("v_lshlrev_b32 v6, 4, v6")
    A(f"v_add_u32 v{VX}, v5, v7")
    A(f"v_add_u32 v{VX+1}, v5, v6"); A(f"v_add_u32 v{VX+1}, {81920-1024}, v{VX+1}")
    A(f"v_add_u32 v{VX+2}, {2*(81920-1024)}, v{VX}")
    A(f"v_add_u32 v{VX+3}, {2*(81920-1024)}, v{VX+1}")
    A("s_mul_i32 s37, s33, 327680"); A("s_mul_i32 s45, s32, 1280"); A("s_add_u32 s37, s37, s45")
    A("s_add_u32 s59, s37, 5120")
    A("s_lshl_b32 s40, s32, 12"); A(f"s_add_u32 s40, s40, {XBASE}"); A("s_add_u32 s41, s40, 16384")
    A("s_mul_i32 s42, s32, 3840")
    A("s_lshl_b32 s58, s84, 7"); A("s_mul_i32 s38, s84, 81920")
    A("s_mov_b32 s22, 10485760"); A("s_mov_b32 s23, 0x20000"); A("s_mov_b32 s26, 2457600"); A("s_mov_b32 s27, 0x20000")
    def adv_x(): A("s_add_u32 s58, s58, 128"); A("s_cmp_eq_u32 s58, 1280"); A("s_cselect_b32 s58, 0, s58")
    def adv_w(): A("s_add_u32 s38, s38, 40960"); A("s_cmp_eq_u32 s38, 819200"); A("s_cselect_b32 s38, 0, s38")
    def dma_x(slotoff, h):
        A(f"s_add_u32 m0, s{40+h}, {slotoff}")
        A(f"s_add_u32 s56, s{59 if h else 37}, s58")
        for jj in range(4):
            A(f"buffer_load_dwordx4 v{VX+jj}, s[20:23], s56 offen offset:{jj*1024} {xf} lds")
    def dma_w(slotoff):
        A(f"s_add_u32 m0, s42, {slotoff}")
        A("s_nop 0")
        for jj in range(4):
            A(f"buffer_load_dwordx4 v{VW+jj}, s[24:27], s38 offen offset:{jj*960} {wf} lds")
        adv_w()
    def w_addr():
        A("s_lshl_b32 s44, s34, 7"); A("s_lshl_b32 s46, s34, 5"); A("s_add_u32 s46, s46, 896"); A("s_mul_i32 s45, s32, 240")
        A("v_mov_b32 v19, s46"); A("v_mov_b32 v20, s44")
        for jj in range(4):
            A(f"v_add_u32 v5, s45, v0")
            if jj: A(f"v_add_u32 v5, {60*jj}, v5")
            A("v_mul_u32_u24 v6, 0xcccd, v5"); A("v_lshrrev_b32 v6, 19, v6")
            A("v_mul_u32_u24 v7, 10, v6"); A("v_sub_u32 v7, v5, v7")
            A("v_cmp_gt_u32 vcc, 8, v7")
            A("v_min_u32 v6, 95, v6")
            A("v_lshrrev_b32 v16, 5, v6"); A("v_and_b32 v6, 31, v6")
            A("v_and_b32 v17, 4, v6"); A("v_lshlrev_b32 v17, 1, v17"); A("v_and_b32 v18, 8, v6"); A("v_lshrrev_b32 v18, 1, v18")
            A("v_and_b32 v6, 0x13, v6"); A("v_or3_b32 v6, v6, v17, v18")
            A("v_mul_u32_u24 v16, 819200, v16"); A("v_mul_u32_u24 v6, 1280, v6")
            A("v_lshl_add_u32 v6, v7, 4, v6"); A("v_cndmask_b32 v17, v19, v20, vcc"); A("v_add3_u32 v6, v6, v16, v17")
            if jj: A(f"v_subrev_u32 v{VW+jj}, {960*jj}, v6")
            else: A(f"v_mov_b32 v{VW}, v6")
    flags=opt.get('flags',False)
    def l_signal():
        A("s_mov_b64 exec, 1"); A("ds_add_u32 v21, v22"); A("v_add_u32 v21, 4, v21"); A("s_mov_b64 exec, -1")
    lwn=[0]
    def l_waitc():
        n=lwn[0]; lwn[0]+=1
        A(f"L_lw{n}:"); A("ds_read_b32 v24, v23"); A("s_waitcnt lgkmcnt(0)"); A("v_readfirstlane_b32 s50, v24"); A("s_nop 0")
        A("s_cmp_eq_u32 s50, 4"); A(f"s_cbranch_scc1 L_lx{n}")
        if opt.get('lsleep',1): A(f"s_sleep {opt.get('lsleep',1)}")
        A("s_sub_u32 s51, s51, 1"); A("s_cmp_gt_i32 s51, 0")
        A(f"s_cbranch_scc1 L_lw{n}"); A(f"L_lx{n}:"); A("v_add_u32 v23, 4, v23")
    lst=opt.get('lstamp',False)
    def ls(k):
        if lst: A(f"s_memtime s[{62+2*k}:{63+2*k}]")
    xfirst=opt.get('xfirst',True)
    if not xfirst: w_addr()
    ls(1)
    A("s_waitcnt lgkmcnt(0)")
    ls(2)
    A("s_mov_b32 s20, s4"); A("s_mov_b32 s21, s5"); A("s_mov_b32 s24, s6"); A("s_mov_b32 s25, s7")
    dma_x(0,0); dma_x(0,1); adv_x()
    ls(3)
    if xfirst: w_addr()
    dma_w(0)
    ls(4)
    ramp=opt.get('ramp',0)
    if ramp==0:
        dma_w(WSLOT); dma_x(XSLOT,0); dma_w(2*WSLOT)
        ls(5); A("s_waitcnt vmcnt(12)"); ls(6); A("s_barrier")
        dma_x(XSLOT,1); adv_x(); dma_w(3*WSLOT)
        ls(7); A("s_waitcnt vmcnt(16)"); ls(8)
        if flags:
            A(f"v_mov_b32 v21, {FL+4}"); A("v_mov_b32 v22, 1"); A(f"v_mov_b32 v23, {FC}"); A("s_mov_b32 s51, 0x100000"); l_signal()
        else: A("s_barrier")
        ls(9); dma_x(2*XSLOT,0)
    elif ramp==1:
        dma_w(WSLOT)
        ls(5); A("s_waitcnt vmcnt(4)"); ls(6); A("s_barrier")
        dma_x(XSLOT,0); dma_w(2*WSLOT)
        ls(7); A("s_waitcnt vmcnt(8)"); ls(8); A("s_barrier")
        ls(9); dma_x(XSLOT,1); adv_x(); dma_w(3*WSLOT); dma_x(2*XSLOT,0)
    elif ramp==2:
        dma_w(WSLOT); dma_x(XSLOT,0)
        ls(5); A("s_waitcnt vmcnt(8)"); ls(6); A("s_barrier")
        dma_w(2*WSLOT); dma_x(XSLOT,1); adv_x()
        ls(7); A("s_waitcnt vmcnt(12)"); ls(8); A("s_barrier")
        ls(9); dma_w(3*WSLOT); dma_x(2*XSLOT,0)
    elif ramp==3:
        ls(5); A("s_waitcnt vmcnt(0)"); ls(6); A("s_barrier")
        dma_w(WSLOT); dma_x(XSLOT,0)
        ls(7); A("s_waitcnt vmcnt(4)"); ls(8); A("s_barrier")
        ls(9); dma_w(2*WSLOT); dma_x(XSLOT,1); adv_x(); dma_w(3*WSLOT); dma_x(2*XSLOT,0)
    A(f"s_mov_b32 s47, {2*XSLOT}"); A("s_mov_b32 s55, 0"); A("s_mov_b32 s39, 0")
    def sync_end(n):
        A(f"s_waitcnt vmcnt({n})")
        if flags: l_signal()
        else: A("s_barrier")
    A("L_ldloop:")
    if flags: l_waitc()
    dma_w("s55"); A(f"s_add_u32 s55, s55, {WSLOT}")
    dma_x("s47",1); adv_x()
    A(f"s_add_u32 s47, s47, {XSLOT}"); A(f"s_cmp_eq_u32 s47, {3*XSLOT}"); A("s_cselect_b32 s47, 0, s47")
    sync_end(16)
    if flags: l_waitc()
    dma_w("s55"); A(f"s_add_u32 s55, s55, {WSLOT}"); A(f"s_and_b32 s55, s55, {4*WSLOT-1}")
    dma_x("s47",0)
    A("s_add_u32 s39, s39, 1")
    if not flags: A("s_cmp_lt_u32 s39, 7")
    sync_end(16)
    if flags: A("s_cmp_lt_u32 s39, 7")
    A("s_cbranch_scc1 L_ldloop")
    if flags: l_waitc()
    dma_w("s55"); A(f"s_add_u32 s55, s55, {WSLOT}")
    dma_x("s47",1)
    sync_end(16)
    if flags: l_waitc()
    dma_w("s55")
    sync_end(12); sync_end(4); sync_end(0)
    if lst:
        A("s_load_dwordx2 s[18:19], s[0:1], 64"); A("s_waitcnt lgkmcnt(0)")
        A("s_cmp_eq_u32 s32, 0"); A("s_cbranch_scc0 L_end")
        A("s_lshl_b32 s44, s2, 8"); A("s_add_u32 s44, s44, 65536"); A("s_add_u32 s18, s18, s44"); A("s_addc_u32 s19, s19, 0")
        A("v_mov_b32 v1, 0")
        for k in range(10):
            A(f"v_mov_b32 v2, s{62+2*k}"); A(f"global_store_dword v1, v2, s[18:19] offset:{k*4}")
    A("s_endpgm")
    A("L_compute:")
    A("s_load_dwordx4 s[8:11], s[0:1], 16")
    A("s_load_dwordx4 s[12:15], s[0:1], 32")
    A("s_load_dwordx2 s[16:17], s[0:1], 48")
    if stamps: A(f"s_load_dwordx2 s[18:19], s[0:1], {56 if stamps=='dbg' else 64}")
    A("s_lshr_b32 s35, s32, 1"); A("s_and_b32 s36, s32, 1")
    A("v_lshrrev_b32 v10, 4, v0"); A("v_and_b32 v11, 15, v0")
    if opt.get('ctouch',0)==1:
        nb=opt.get('ctouch')
        A("s_getpc_b64 s[54:55]"); A("L_pc:")
        A(f"s_sub_u32 s54, s54, L_pc-{NAME}"); A("s_subb_u32 s55, s55, 0")
        A("s_lshl_b32 s45, s32, 13"); A("v_lshlrev_b32 v1, 7, v0"); A("v_add_u32 v1, s45, v1")
        A(f"v_cmp_gt_u32 vcc, L_end-{NAME}, v1"); A("s_and_saveexec_b64 s[56:57], vcc"); A("s_cbranch_execz L_noct")
        A(f"global_load_dword v{VD}, v1, s[54:55]")
        A("L_noct:"); A("s_mov_b64 exec, -1")
    A("s_cmp_eq_u32 s32, 0"); A("s_cbranch_scc0 L_noparam")
    A("s_lshl_b32 s44, s34, 7"); A("s_lshl_b32 s46, s34, 5"); A("s_add_u32 s46, s46, 896")
    A("v_cmp_gt_u32 vcc, 32, v0"); A("v_mov_b32 v4, s46"); A("v_mov_b32 v12, s44"); A("v_lshlrev_b32 v1, 2, v0"); A("v_cndmask_b32 v4, v4, v12, vcc"); A("v_add_u32 v1, v4, v1")
    A("s_mov_b32 exec_hi, 0xff")
    A("s_waitcnt lgkmcnt(0)")
    for pi,sp in enumerate(["s[8:9]","s[10:11]","s[12:13]","s[14:15]"]):
        A(f"global_load_dword v{92+pi}, v1, {sp}")
    A("s_mov_b64 exec, -1")
    A("L_noparam:")
    ntinit=0
    if touch:
        ntinit=len(tinit)
        A("s_cmp_eq_u32 s36, 1"); A("s_cbranch_scc1 L_tw")
        A("s_lshl_b32 s45, s35, 4"); A(f"v_add_u32 v{VT}, s45, v0")
        A(f"v_lshrrev_b32 v4, 3, v{VT}"); A(f"v_and_b32 v{VT}, 7, v{VT}"); A(f"v_mul_u32_u24 v{VT}, 1280, v{VT}")
        A("s_lshl_b32 s45, s34, 2"); A("v_add_u32 v4, s45, v4"); A("v_mul_u32_u24 v4, 10240, v4"); A(f"v_add_u32 v{VT}, v{VT}, v4")
        A("s_mul_i32 s45, s33, 327680"); A(f"v_add_u32 v{VT}, s45, v{VT}")
        A("v_cmp_gt_u32 vcc, 16, v0"); A("s_mov_b32 s48, 128"); A("s_mov_b32 s49, 1280")
        A("s_waitcnt lgkmcnt(0)")
        A("s_mov_b32 s20, s4"); A("s_mov_b32 s21, s5"); A("s_mov_b32 s22, 10485760")
        A("s_branch L_tj")
        A("L_tw:")
        A("s_lshr_b32 s45, s2, 3"); A("s_mul_i32 s45, s45, 60"); A("s_mul_i32 s46, s35, 30"); A("s_add_u32 s45, s45, s46")
        A(f"v_add_u32 v{VT}, s45, v0"); A(f"v_mul_u32_u24 v4, 0xcccd, v{VT}"); A("v_lshrrev_b32 v4, 19, v4")
        A(f"v_mul_u32_u24 v1, 10, v4"); A(f"v_sub_u32 v{VT}, v{VT}, v1"); A(f"v_lshlrev_b32 v{VT}, 7, v{VT}")
        A("v_lshrrev_b32 v1, 6, v4"); A("v_and_b32 v4, 63, v4"); A("v_mul_u32_u24 v1, 819200, v1"); A("v_mul_u32_u24 v4, 1280, v4")
        A(f"v_add3_u32 v{VT}, v{VT}, v1, v4")
        A("v_cmp_gt_u32 vcc, 30, v0"); A("s_mov_b32 s48, 81920"); A("s_mov_b32 s49, 819200")
        A("s_waitcnt lgkmcnt(0)")
        A("s_mov_b32 s20, s6"); A("s_mov_b32 s21, s7"); A("s_mov_b32 s22, 2457600")
        A("L_tj:")
        A("s_mov_b32 s23, 0x20000")
        A("v_mov_b32 v4, 0x7ff00000"); A(f"v_cndmask_b32 v{VT}, v4, v{VT}, vcc")
        def tstage(st,dst):
            A(f"s_add_u32 {dst}, s84, {st}"); A(f"s_cmp_ge_u32 {dst}, 10"); A("s_cselect_b32 s46, 10, 0"); A(f"s_sub_u32 {dst}, {dst}, s46"); A(f"s_mul_i32 {dst}, {dst}, s48")
        for st in tinit:
            tstage(st,"s45")
            A(f"buffer_load_dword v{VD}, v{VT}, s[20:23], s45 offen {tf}")
        tstage(touch,"s57")
    A("v_lshrrev_b32 v1, 1, v11"); A("v_xor_b32 v1, v1, v10"); A("v_lshlrev_b32 v1, 4, v1")
    A("v_lshl_add_u32 v1, v11, 7, v1")
    A("s_lshl_b32 s45, s35, 11"); A(f"s_add_u32 s45, s45, {XBASE}")
    A(f"v_add_u32 v{VXL}, s45, v1"); A(f"v_xor_b32 v{VXL+1}, 64, v{VXL}")
    A("v_lshrrev_b32 v1, 1, v10"); A("v_lshlrev_b32 v1, 4, v1"); A("v_and_b32 v4, 1, v10"); A("v_lshl_add_u32 v1, v4, 2, v1")
    A("v_bfe_u32 v4, v0, 2, 2"); A("v_add_u32 v1, v1, v4"); A("v_mul_u32_u24 v1, 160, v1")
    A("v_and_b32 v4, 3, v0"); A("v_lshl_add_u32 v1, v4, 3, v1")
    A(f"v_add_u32 v{VWE}, {WSLOT}, v1"); A(f"v_add_u32 v{VWO}, {2*WSLOT}, v1")
    A(f"v_mov_b32 v{VO5}, v1")
    for r in range(ACC,ACC+80): A(f"v_mov_b32 v{r}, 0")
    A(f"v_lshlrev_b32 v{VST}, 4, v10"); A(f"v_add_u32 v{VST}, {STB}, v{VST}")
    A("s_cmp_eq_u32 s32, 0"); A("s_cbranch_scc0 L_noparam2")
    A("s_mov_b32 exec_hi, 0xff")
    A("s_mov_b32 s52, 0xbfb8aa3b")
    A(f"s_waitcnt vmcnt({ntinit})")
    for e in range(2):
        def ex(dst,src):
            if e==0: A(f"v_lshlrev_b32 v{dst}, 16, v{src}")
            else: A(f"v_and_b32 v{dst}, 0xffff0000, v{src}")
        ex(96,93); A("v_add_f32 v96, 0x3727c5ac, v96"); A("v_rsq_f32 v96, v96")
        ex(97,94); ex(98,92); ex(99,95)
        A("v_mul_f32 v96, v96, v97"); A("v_fma_f32 v99, -v98, v96, v99")
        A(f"v_mul_f32 v{100+e}, s52, v96"); A(f"v_mul_f32 v{102+e}, s52, v99")
    A(f"v_lshlrev_b32 v1, 3, v0"); A(f"v_add_u32 v1, {STB}, v1")
    A("ds_write_b64 v1, v[100:101]"); A("ds_write_b64 v1, v[102:103] offset:320")
    A("s_mov_b64 exec, -1")
    A("L_noparam2:")
    if flags:
        A(f"v_lshlrev_b32 v1, 2, v0"); A(f"v_add_u32 v1, {FL}, v1"); A("v_mov_b32 v4, 0"); A("ds_write_b32 v1, v4")
        A("v_cmp_eq_u32 vcc, 0, v0"); A(f"v_lshlrev_b32 v1, 2, v0"); A(f"v_add_u32 v1, {FSCR}, v1"); A(f"v_mov_b32 v4, {FC}")
        A(f"v_cndmask_b32 v{VCA}, v1, v4, vcc"); A("v_mov_b32 v4, 4"); A(f"v_cndmask_b32 v{VCI}, 0, v4, vcc")
        A(f"v_mov_b32 v{VONE}, 1"); A(f"v_mov_b32 v{VFA}, {FL+4}")
    A("s_waitcnt lgkmcnt(0)")
    A("s_mov_b32 s28, s16"); A("s_mov_b32 s29, s17"); A("s_mov_b32 s30, 10485760"); A("s_mov_b32 s31, 0x20000")
    A("s_mov_b32 s52, 0x3fb8aa3b"); A("s_mov_b32 s53, 0x3fb8aa3b")
    stamp(1)
    A("s_cmp_eq_u32 s36, 1"); A("s_cbranch_scc1 L_dh1")
    for dh in range(2):
        if dh==1: A("L_dh1:")
        tiles=[0,1,4] if dh==0 else [2,3,4]
        s0=0 if dh==0 else 4
        def valid(s,k): return 0<=s+k-1<=7
        def grp(ti,sl):
            s=sl if ti<2 else s0+sl
            return [(ti,sl,s,k) for k in range(3) if valid(s,k)]
        mf=[m for ti in range(2) for s in range(8) for m in grp(ti,s)]+[m for sl in range(4) for m in grp(2,sl)]
        assert len(mf)==55
        def mfma(setn,m):
            ti,sl,s,k=m; a=acc(ti,sl)
            return f"v_mfma_f32_16x16x32_bf16 v[{a}:{a+3}], {fw(setn,k,ti)}, {fx(setn,s+k-1)}, v[{a}:{a+3}]"
        def reads(setn,vw):
            xs=[f"ds_read_b128 {fx(setn,f)}, v{VXA} offset:{f*4096}" for f in range(8)]
            ws=[]
            for ti in range(3):
                for k in range(3):
                    for hh in range(2):
                        c,r=fwreg(setn,k,ti); r+=hh*2
                        ws.append(f"ds_read_b64_tr_b16 {c}[{r}:{r+1}], v{vw} offset:{k*5120+hh*1280+tiles[ti]*32}")
            return xs+ws
        A("s_barrier")
        stamp(2)
        if touch:
            for st in tA:
                tstage(st,"s45")
                A(f"buffer_load_dword v{VD}, v{VT}, s[20:23], s45 offen {tf}")
        A(f"v_mov_b32 v{VXA}, v{VXL}")
        for i,r in enumerate(reads(0,VO5)):
            A(r)
            if i%10==9: A("s_waitcnt lgkmcnt(4)")
        A("s_lshl_b32 s45, s35, 4"); A("v_add_u32 v1, s45, v11"); A("v_mul_u32_u24 v1, 10240, v1")
        A("v_lshrrev_b32 v4, 1, v10"); A("v_lshl_add_u32 v1, v4, 4, v1"); A("v_and_b32 v4, 1, v10")
        A(f"v_lshl_add_u32 v{VO}, v4, 5, v1")
        if dh: A(f"v_add_u32 v{VO}, 64, v{VO}")
        A("v_mul_u32_u24 v4, 1280, v4"); A(f"v_add_u32 v{VO5}, v1, v4")
        A("s_mul_i32 s44, s33, 327680"); A("s_lshl_b32 s45, s34, 5"); A("s_add_u32 s43, s44, s45"); A("s_add_u32 s43, s43, 1024")
        A("s_lshl_b32 s45, s34, 7"); A("s_add_u32 s44, s44, s45")
        def c_check(tag):
            A(f"v_readfirstlane_b32 s50, v{VF}"); A(f"v_add_u32 v{VFA}, 4, v{VFA}")
            A("s_cmp_eq_u32 s50, 4"); A(f"s_cbranch_scc0 L_slow{tag}"); A(f"L_back{tag}:")
        def c_slow(tag):
            A(f"L_slow{tag}:"); A(f"ds_read_b32 v{VF}, v{VFA} offset:0".replace("offset:0","")) if False else None
            A(f"v_subrev_u32 v{VF}, 4, v{VFA}"); A(f"L_spin{tag}:"); A(f"ds_read_b32 v1, v{VF}"); A("s_waitcnt lgkmcnt(0)"); A("v_readfirstlane_b32 s50, v1"); A("s_nop 0")
            A("s_cmp_eq_u32 s50, 4"); A(f"s_cbranch_scc1 L_back{tag}")
            A("s_sub_u32 s51, s51, 1"); A("s_cmp_gt_i32 s51, 0"); A(f"s_cbranch_scc1 L_spin{tag}")
            if tag.endswith('o'): A("s_cmp_lt_u32 s39, 9") if False else None
            A(f"s_branch L_back{tag}")
        if flags:
            A(f"ds_read_b32 v{VF}, v{VFA}")
            A("s_waitcnt lgkmcnt(0)")
        else:
            A("s_waitcnt lgkmcnt(0)")
            A("s_barrier")
        def fl_gaps(tag,signal=True):
            g0=[f"ds_add_u32 v{VCA}, v{VONE}"] if signal else []
            g1=([f"v_add_u32 v{VCA}, v{VCI}, v{VCA}"] if signal else [])+[f"v_readfirstlane_b32 s50, v{VF}"]
            g2=[f"v_add_u32 v{VFA}, 4, v{VFA}", "s_cmp_eq_u32 s50, 4"]
            g3=[f"s_cbranch_scc0 L_slow{tag}", f"L_back{tag}:"]
            return [g0,g1,g2,g3]
        A("s_mov_b32 s39, 0"); A("s_mov_b32 s47, 0")
        if flags: A("s_mov_b32 s51, 0x100000")
        if opt.get('pstamp',False): A("s_mov_b32 m0, 0"); A("v_mov_b32 v10, 0")
        A(f"L_loop{dh}:")
        for par in range(2):
            cur=par; nxt=1-par
            pre=[]; book=[]
            if par==0:
                pre.append(f"v_add_u32 v{VXA}, s47, v{VXL+1}")
                vw=VWE
                book=[f"v_xor_b32 v{VWE}, 0x8000, v{VWE}", f"s_add_u32 s47, s47, {XSLOT}", f"s_cmp_eq_u32 s47, {3*XSLOT}", "s_cselect_b32 s47, 0, s47"]
                if touch:
                    book=book+[f"s_cmp_eq_u32 s39, {10-touch}", f"s_cselect_b32 s22, 0, s22",
                      f"buffer_load_dword v{VD}, v{VT}, s[20:23], s57 offen {tf}",
                      "s_add_u32 s57, s57, s48", "s_cmp_eq_u32 s57, s49", "s_cselect_b32 s57, 0, s57"]
            else:
                pre.append(f"v_add_u32 v{VXA}, s47, v{VXL}")
                vw=VWO
                book=[f"v_xor_b32 v{VWO}, 0x8000, v{VWO}", "s_add_u32 s39, s39, 1", "s_cmp_lt_u32 s39, 9"]
            rd=reads(nxt,vw)
            gaps=[[] for _ in range(55)]
            g=1
            if flags:
                fg=fl_gaps(f"{dh}{'eo'[par]}")
                for q in range(4): gaps[q]+=fg[q]
                gaps[3]+=pre
                g=4
            else: gaps[0]+=pre
            for r in rd:
                gaps[g].append(r); g+=1
            g=max(g,30)+4
            for b_ in book:
                gaps[g].append(b_); g+=1
            if flags: gaps[opt.get('fpos',50)].append(f"ds_read_b32 v{VF}, v{VFA}")
            bp=opt.get('bpos',None)
            if bp and not flags:
                gaps[bp[0]].append("s_waitcnt lgkmcnt(0)"); gaps[bp[1]].append("s_barrier")
            if opt.get('pstamp',False): A("s_memtime s[86:87]")
            for i,m in enumerate(mf):
                A(mfma(cur,m))
                for x in gaps[i]: A(x)
            if not (bp and not flags): A("s_waitcnt lgkmcnt(0)")
            if opt.get('pstamp',False):
                if bp: A("s_waitcnt lgkmcnt(0)")
                A("v_writelane_b32 v10, s86, m0"); A("s_add_u32 m0, m0, 1")
                if par==1: A("s_cmp_lt_u32 s39, 9")
            if not flags and not bp: A("s_barrier")
        A(f"s_cbranch_scc1 L_loop{dh}")
        if flags:
            A(f"s_branch L_tail{dh}")
            for tag in (f"{dh}e",f"{dh}o",f"{dh}t"): c_slow(tag)
            A(f"L_tail{dh}:")
        stamp(3)
        def K(setn,ti_list,sl): return [mfma(setn,m) for ti in ti_list for m in grp(ti,sl)]
        K18=lambda s: K(0,(0,1),s)
        K19=lambda s: K(1,(0,1),s)
        T18=lambda sl: K(0,(2,),sl)
        T19=lambda sl: K(1,(2,),sl)
        ph1=K18(0)+K18(1)+K18(2)+K18(3)+K18(4)
        rd=[f"v_add_u32 v{VXA}, s47, v{VXL+1}"]+reads(1,VWE)
        st=[]
        for ti in range(2):
            st.append(f"ds_read_b128 v[{SR+ti*4}:{SR+ti*4+3}], v{VST} offset:{tiles[ti]*64}")
            st.append(f"ds_read_b128 v[{TR+ti*4}:{TR+ti*4+3}], v{VST} offset:{320+tiles[ti]*64}")
        rd=rd+st
        g0=0
        pg=[[] for _ in ph1]
        if flags:
            fg=fl_gaps(f"{dh}t",signal=False)
            for q in range(4): pg[q]+=fg[q]
            g0=3
        nslots=len(ph1)-g0-4
        ri=0
        for i in range(g0,len(ph1)):
            rem=len(rd)-ri; left=max(1,len(ph1)-3-i)
            k=min(rem,2 if rem>left else 1)
            for _ in range(k): pg[i].append(rd[ri]); ri+=1
        assert ri==len(rd)
        for i,m in enumerate(ph1):
            A(m)
            for x in pg[i]: A(x)
        A("s_waitcnt lgkmcnt(0)")
        for m in K19(0): A(m)
        slots=[K19(1)+K18(5)[:3], K19(2)+K18(5)[3:], K19(3)+K18(6)[:3], K19(4)+K18(6)[3:],
               K19(5)+K18(7)[:2], K19(6)+K18(7)[2:], K19(7)+T18(0)+T18(1), T19(0)+T19(1)+T18(2),
               T19(2)+T18(3)+T19(3), []]
        assert sum(len(x) for x in slots)+len(ph1)+len(K19(0))==110
        S4=acc(1,0); T4=acc(1,1)
        def epi_head(a,Sa,Ta,b,Sb,Tb):
            o=[]
            for (r,S,T) in ((a,Sa,Ta),(b,Sb,Tb)):
                for h in range(2):
                    o.append(f"v_pk_fma_f32 v[{r+2*h}:{r+2*h+1}], v[{r+2*h}:{r+2*h+1}], v[{S+2*h}:{S+2*h+1}], v[{T+2*h}:{T+2*h+1}]")
            return o
        def epi_body(a,b,mfl,extra,pend=None):
            o=[]
            tr=[f"v_exp_f32 v{E+i}, v{r}" for i,r in enumerate([a,a+1,a+2,a+3,b,b+1,b+2,b+3])]
            mid=[f"v_pk_fma_f32 v[{E+2*h}:{E+2*h+1}], v[{E+2*h}:{E+2*h+1}], s[52:53], s[52:53]" for h in range(4)]
            tr2=[f"v_rcp_f32 v{E+i}, v{E+i}" for i in range(8)]
            mfl=list(mfl) if not opt.get('nomf',False) else []
            n=len(mfl)
            pos=sorted(opt.get('mpos',[0,2,4,8,10,12,1,9,3,11,5,13,6,14])[:n])
            mi=0
            for i,t in enumerate(tr+tr2):
                if i==8: o+=mid
                if i in pos: o.append(mfl[mi]); mi+=1
                o.append(t)
                if pend and i==opt.get('spos',5): o.append(pend)
            o+=extra
            for h,r in enumerate([a,a+2,b,b+2]):
                o.append(f"v_pk_mul_f32 v[{r}:{r+1}], v[{r}:{r+1}], v[{E+2*h}:{E+2*h+1}] neg_lo:[1,0] neg_hi:[1,0]")
            o.append(f"v_cvt_pk_bf16_f32 v{a}, v{a}, v{a+1}"); o.append(f"v_cvt_pk_bf16_f32 v{a+1}, v{a+2}, v{a+3}")
            o.append(f"v_cvt_pk_bf16_f32 v{a+2}, v{b}, v{b+1}"); o.append(f"v_cvt_pk_bf16_f32 v{a+3}, v{b+2}, v{b+3}")
            return o
        def epi_tail(a,vo,sfl,sreg):
            o=[f"v_permlane16_swap_b32 v{a}, v{a+2}", f"v_permlane16_swap_b32 v{a+1}, v{a+3}"]
            if not opt.get('nostore',False): o.append(f"buffer_store_dwordx4 v[{a}:{a+3}], v{vo}, s[28:31], s{sreg} offen {sfl}")
            return o
        items=[(acc(0,s),SR,TR,acc(1,s),SR+4,TR+4,VO,s*1280,"s44",sf) for s in range(8)]
        items+=[(acc(2,2*sp),S4,T4,acc(2,2*sp+1),S4,T4,VO5,(s0+2*sp)*1280,"s43",sf5) for sp in range(2)]
        A("s_nop 3"); A("s_nop 3")
        for x in epi_head(*items[0][:6]): A(x)
        pend=None
        for i,it in enumerate(items):
            a,Sa,Ta,b,Sb,Tb,vo,soff,sbase,sfl=it
            extra=[]
            if i==2:
                extra=[f"ds_read_b128 v[{S4}:{S4+3}], v{VST} offset:{4*64}", f"ds_read_b128 v[{T4}:{T4+3}], v{VST} offset:{320+4*64}"]
            for x in epi_body(a,b,slots[i],extra+[f"s_add_u32 s{45+(i&1)}, {sbase}, {soff}"],pend): A(x)
            pend=None
            if i==7: A("s_waitcnt lgkmcnt(0)")
            if i+1<len(items):
                for x in epi_head(*items[i+1][:6]): A(x)
            else: A("s_nop 1")
            tl=epi_tail(a,vo,sfl,45+(i&1))
            if opt.get('spos',5)>=0 and i+1<len(items) and not opt.get('nostore',False):
                pend=tl.pop()
            for x in tl: A(x)
        if stamps:
            stamp(4)
            A("s_waitcnt vmcnt(0)")
            stamp(5)
            A("s_waitcnt lgkmcnt(0)")
            A(f"s_cmp_eq_u32 s32, {opt.get('stampwave',0)}"); A("s_cbranch_scc0 L_end")
            A("v_mov_b32 v1, 0")
            if stamps=='dbg':
                A(f"s_cmp_eq_u32 s2, {opt.get('dbgwg',77)}"); A("s_cbranch_scc0 L_end")
                A("s_mov_b64 exec, 1")
                for k in range(5):
                    a=60+4*k
                    A(f"s_sub_u32 s44, s{a+4}, s{a}"); A(f"s_sub_u32 s45, s{a+6}, s{a+2}")
                    A("v_mov_b32 v2, s44"); A("v_mov_b32 v3, s45"); A(f"global_store_dwordx2 v1, v[2:3], s[18:19] offset:{k*8}"); A("s_nop 1")
            else:
                if opt.get('pstamp',False):
                    A("v_writelane_b32 v10, s74, m0")
                    A("s_lshl_b32 s44, s2, 8"); A("s_add_u32 s44, s44, 65536"); A("v_lshlrev_b32 v4, 2, v0"); A("v_add_u32 v4, s44, v4")
                    A("global_store_dword v4, v10, s[18:19]")
                A("s_mul_i32 s44, s2, 96"); A("s_add_u32 s18, s18, s44"); A("s_addc_u32 s19, s19, 0")
                for k,a in enumerate(range(60,84,2)):
                    A(f"v_mov_b32 v2, s{a}"); A(f"v_mov_b32 v3, s{a+1}"); A(f"global_store_dwordx2 v1, v[2:3], s[18:19] offset:{k*8}"); A("s_nop 1")
        if dh==0: A("s_endpgm")
    A("L_end:"); A("s_endpgm")
    A('.section .rodata,"a"'); A(".p2align 6"); A(f".amdhsa_kernel {NAME}")
    A(f"  .amdhsa_next_free_vgpr {NV+NA}"); A("  .amdhsa_next_free_sgpr 96"); A(f"  .amdhsa_accum_offset {NV}")
    A("  .amdhsa_group_segment_fixed_size 0"); A("  .amdhsa_kernarg_size 72"); A("  .amdhsa_user_sgpr_count 2")
    A("  .amdhsa_user_sgpr_kernarg_segment_ptr 1"); A("  .amdhsa_system_sgpr_workgroup_id_x 1"); A(".end_amdhsa_kernel")
    return "\n".join(L)+"\n"
if __name__=="__main__":
    opt={}
    for a in sys.argv[2:]:
        k,v=a.split('=',1); opt[k]=eval(v)
    open(sys.argv[1],"w").write(gen(opt))
```

```python
import sys
NAME="standalone__batchnorm__sampling_kernel"
HEADER=open('standalone__batchnorm__sampling.s.ref').read().split('; Override launch')[0]

WSLOT=16384; XBASE=65536; XSLOT=32768; LDS_BYTES=163840; STB=15424
VXL=2; VXA=4; VWE=5; VWO=6; VO=7; VO5=8; VST=9
ACC=12; WV=92; VT=128; VD=129
SR=130; TR=138; E=146
FL=31808; FC=FL+128; FSCR=FL+256
VF=130; VFA=131; VCA=132; VCI=133; VONE=134
NV=156; NA=100
def acc(ti,s): return ACC+((ti*8+s)*4)
def fx(setn,f): return f"a[{setn*68+f*4}:{setn*68+f*4+3}]"
def fwreg(setn,k,ti):
    idx=(ti*3+k)*4
    return ('a',32+idx) if setn==0 else ('v',WV+idx)
def fw(setn,k,ti):
    c,r=fwreg(setn,k,ti); return f"{c}[{r}:{r+3}]"

def gen(opt):
    L=[]; A=L.append
    stamps=opt.get('stamps',False)
    xf=opt.get('xf',''); wf=opt.get('wf',''); sf=opt.get('sf','sc1'); sf5=opt.get('sf5','')
    touch=opt.get('touch',3); tinit=opt.get('tinit',[1,2]); tA=opt.get('tA',[]); tf=opt.get('tf','')
    def stamp(k):
        if stamps: A(f"s_memrealtime s[{60+4*k}:{61+4*k}]"); A(f"s_memtime s[{62+4*k}:{63+4*k}]")
    def tstage(st,dst):
        A(f"s_add_u32 {dst}, s84, {st}"); A(f"s_cmp_ge_u32 {dst}, 10"); A("s_cselect_b32 s46, 10, 0"); A(f"s_sub_u32 {dst}, {dst}, s46"); A(f"s_mul_i32 {dst}, {dst}, s48")
    early=opt.get('early',False)
    def emit_params():
        A("s_cmp_eq_u32 s32, 0"); A("s_cbranch_scc0 L_noparam")
        A("s_lshl_b32 s44, s34, 7"); A("s_lshl_b32 s46, s34, 5"); A("s_add_u32 s46, s46, 896")
        A("v_cmp_gt_u32 vcc, 32, v0"); A("v_mov_b32 v4, s46"); A("v_mov_b32 v12, s44"); A("v_lshlrev_b32 v1, 2, v0"); A("v_cndmask_b32 v4, v4, v12, vcc"); A("v_add_u32 v1, v4, v1")
        A("s_mov_b32 exec_hi, 0xff")
        A("s_waitcnt lgkmcnt(0)")
        for pi,sp in enumerate(["s[8:9]","s[10:11]","s[12:13]","s[14:15]"]):
            A(f"global_load_dword v{92+pi}, v1, {sp}")
        A("s_mov_b64 exec, -1")
        A("L_noparam:")

    ntinit=len(tinit) if touch else 0
    def emit_touch():
        if touch:
            A("s_cmp_eq_u32 s36, 1"); A("s_cbranch_scc1 L_tw")
            A("s_lshl_b32 s45, s35, 4"); A(f"v_add_u32 v{VT}, s45, v0")
            A(f"v_lshrrev_b32 v4, 3, v{VT}"); A(f"v_and_b32 v{VT}, 7, v{VT}"); A(f"v_mul_u32_u24 v{VT}, 1280, v{VT}")
            A("s_lshl_b32 s45, s34, 2"); A("v_add_u32 v4, s45, v4"); A("v_mul_u32_u24 v4, 10240, v4"); A(f"v_add_u32 v{VT}, v{VT}, v4")
            A("s_mul_i32 s45, s33, 327680"); A(f"v_add_u32 v{VT}, s45, v{VT}")
            A("v_cmp_gt_u32 vcc, 16, v0"); A("s_mov_b32 s48, 128"); A("s_mov_b32 s49, 1280")
            A("s_waitcnt lgkmcnt(0)")
            A("s_mov_b32 s20, s4"); A("s_mov_b32 s21, s5"); A("s_mov_b32 s22, 10485760")
            A("s_branch L_tj")
            A("L_tw:")
            A("s_lshr_b32 s45, s2, 3"); A("s_mul_i32 s45, s45, 60"); A("s_mul_i32 s46, s35, 30"); A("s_add_u32 s45, s45, s46")
            A(f"v_add_u32 v{VT}, s45, v0"); A(f"v_mul_u32_u24 v4, 0xcccd, v{VT}"); A("v_lshrrev_b32 v4, 19, v4")
            A(f"v_mul_u32_u24 v1, 10, v4"); A(f"v_sub_u32 v{VT}, v{VT}, v1"); A(f"v_lshlrev_b32 v{VT}, 7, v{VT}")
            A("v_lshrrev_b32 v1, 6, v4"); A("v_and_b32 v4, 63, v4"); A("v_mul_u32_u24 v1, 819200, v1"); A("v_mul_u32_u24 v4, 1280, v4")
            A(f"v_add3_u32 v{VT}, v{VT}, v1, v4")
            A("v_cmp_gt_u32 vcc, 30, v0"); A("s_mov_b32 s48, 81920"); A("s_mov_b32 s49, 819200")
            A("s_waitcnt lgkmcnt(0)")
            A("s_mov_b32 s20, s6"); A("s_mov_b32 s21, s7"); A("s_mov_b32 s22, 2457600")
            A("L_tj:")
            A("s_mov_b32 s23, 0x20000")
            A("v_mov_b32 v4, 0x7ff00000"); A(f"v_cndmask_b32 v{VT}, v4, v{VT}, vcc")
            for st in tinit:
                tstage(st,"s45")
                A(f"buffer_load_dword v{VD}, v{VT}, s[20:23], s45 offen {tf}")
            tstage(touch,"s57")

    A(HEADER.rstrip())
    A(f"; @launch grid=(256,1,1) block=(512,1,1) lds={LDS_BYTES}")
    A('.amdgcn_target "amdgcn-amd-amdhsa--gfx950"')
    A(".text"); A(f".globl {NAME}"); A(".p2align 8"); A(f".type {NAME},@function"); A(f"{NAME}:")
    A("s_cmp_ge_u32 s2, 256"); A("s_cbranch_scc1 L_end")
    stamp(0)
    if early:
        A("s_load_dwordx8 s[4:11], s[0:1], 0"); A("s_load_dwordx4 s[12:15], s[0:1], 32")
    else: A("s_load_dwordx4 s[4:7], s[0:1], 0")
    if opt.get('ctouch',0)==2:
        A("s_getpc_b64 s[54:55]"); A("L_pc:")
        A("v_lshrrev_b32 v1, 6, v0"); A("v_and_b32 v2, 63, v0"); A("v_lshl_add_u32 v3, v1, 4, v2"); A("v_lshlrev_b32 v3, 7, v3")
        A(f"s_sub_u32 s54, s54, L_pc-{NAME}"); A("s_subb_u32 s55, s55, 0")
        A(f"v_cmp_gt_u32 vcc, 16, v2"); A(f"v_cmp_gt_u32 s[56:57], s58, v3") if False else None
        A(f"v_min_u32 v3, L_end-{NAME}, v3")
        A("s_and_saveexec_b64 s[56:57], vcc")
        A(f"global_load_dword v{VD}, v3, s[54:55]")
        A("s_mov_b64 exec, -1")
    A("v_lshrrev_b32 v1, 6, v0"); A("v_and_b32 v0, 63, v0")
    A("s_and_b32 s33, s2, 7"); A("v_readfirstlane_b32 s32, v1")
    if opt.get('ctouch',0)==3:
        A("s_getpc_b64 s[54:55]"); A("L_pc:")
        A(f"s_sub_u32 s54, s54, L_pc-{NAME}"); A("s_subb_u32 s55, s55, 0")
        A("s_sub_u32 s56, s32, 2"); A("s_cmp_lt_u32 s56, 2"); A("s_cbranch_scc0 L_noct")
        A("s_lshl_b32 s56, s56, 13"); A("v_lshlrev_b32 v3, 7, v0"); A("v_add_u32 v3, s56, v3"); A(f"v_min_u32 v3, L_end-{NAME}, v3")
        A(f"global_load_dword v{VD}, v3, s[54:55]")
        A("L_noct:")
    A("s_lshr_b32 s34, s2, 3"); A("s_lshr_b32 s35, s34, 3"); A("s_and_b32 s34, s34, 7")
    if opt.get('rot',True):
        A("s_mul_i32 s84, s33, 5"); A("s_lshr_b32 s84, s84, 2")
    else: A("s_mov_b32 s84, 0")
    A("s_lshl_b32 s33, s33, 2"); A("s_add_u32 s33, s33, s35")
    if early==2:
        pass
    elif early:
        A("s_cmp_ge_u32 s32, 4"); A("s_cbranch_scc1 L_loader")
        A("s_lshr_b32 s35, s32, 1"); A("s_and_b32 s36, s32, 1")
        emit_params()
        emit_touch()
        A("s_branch L_compute")
        A("L_loader:")
    else:
        A("s_cmp_lt_u32 s32, 4"); A("s_cbranch_scc1 L_compute")
    VX=8; VW=12
    if early==2:
        A("s_mov_b32 s85, s32"); A("s_and_b32 s32, s32, 3")
    else: A("s_sub_u32 s32, s32, 4")
    A("v_lshrrev_b32 v2, 4, v0"); A("v_lshrrev_b32 v5, 3, v0")
    A("v_and_b32 v6, 7, v0"); A("v_xor_b32 v6, v6, v2")
    A("v_mul_u32_u24 v5, 10240, v5")
    A("v_lshlrev_b32 v7, 4, v6"); A("v_xor_b32 v6, 4, v6"); A("v_lshlrev_b32 v6, 4, v6")
    A(f"v_add_u32 v{VX}, v5, v7")
    A(f"v_add_u32 v{VX+1}, v5, v6"); A(f"v_add_u32 v{VX+1}, {81920-1024}, v{VX+1}")
    A(f"v_add_u32 v{VX+2}, {2*(81920-1024)}, v{VX}")
    A(f"v_add_u32 v{VX+3}, {2*(81920-1024)}, v{VX+1}")
    A("s_mul_i32 s37, s33, 327680"); A("s_mul_i32 s45, s32, 1280"); A("s_add_u32 s37, s37, s45")
    A("s_add_u32 s59, s37, 5120")
    A("s_lshl_b32 s40, s32, 12"); A(f"s_add_u32 s40, s40, {XBASE}"); A("s_add_u32 s41, s40, 16384")
    A("s_mul_i32 s42, s32, 3840")
    A("s_lshl_b32 s58, s84, 7"); A("s_mul_i32 s38, s84, 81920")
    A("s_mov_b32 s22, 10485760"); A("s_mov_b32 s23, 0x20000"); A("s_mov_b32 s26, 2457600"); A("s_mov_b32 s27, 0x20000")
    def adv_x(): A("s_add_u32 s58, s58, 128"); A("s_cmp_eq_u32 s58, 1280"); A("s_cselect_b32 s58, 0, s58")
    def adv_w(): A("s_add_u32 s38, s38, 40960"); A("s_cmp_eq_u32 s38, 819200"); A("s_cselect_b32 s38, 0, s38")
    def dma_x(slotoff, h):
        A(f"s_add_u32 m0, s{40+h}, {slotoff}")
        A(f"s_add_u32 s56, s{59 if h else 37}, s58")
        for jj in range(4):
            A(f"buffer_load_dwordx4 v{VX+jj}, s[20:23], s56 offen offset:{jj*1024} {xf} lds")
    def dma_w(slotoff):
        A(f"s_add_u32 m0, s42, {slotoff}")
        A("s_nop 0")
        for jj in range(4):
            A(f"buffer_load_dwordx4 v{VW+jj}, s[24:27], s38 offen offset:{jj*960} {wf} lds")
        adv_w()
    def w_addr():
        A("s_lshl_b32 s44, s34, 7"); A("s_lshl_b32 s46, s34, 5"); A("s_add_u32 s46, s46, 896"); A("s_mul_i32 s45, s32, 240")
        A("v_mov_b32 v19, s46"); A("v_mov_b32 v20, s44")
        for jj in range(4):
            A(f"v_add_u32 v5, s45, v0")
            if jj: A(f"v_add_u32 v5, {60*jj}, v5")
            A("v_mul_u32_u24 v6, 0xcccd, v5"); A("v_lshrrev_b32 v6, 19, v6")
            A("v_mul_u32_u24 v7, 10, v6"); A("v_sub_u32 v7, v5, v7")
            A("v_cmp_gt_u32 vcc, 8, v7")
            A("v_min_u32 v6, 95, v6")
            A("v_lshrrev_b32 v16, 5, v6"); A("v_and_b32 v6, 31, v6")
            A("v_and_b32 v17, 4, v6"); A("v_lshlrev_b32 v17, 1, v17"); A("v_and_b32 v18, 8, v6"); A("v_lshrrev_b32 v18, 1, v18")
            A("v_and_b32 v6, 0x13, v6"); A("v_or3_b32 v6, v6, v17, v18")
            A("v_mul_u32_u24 v16, 819200, v16"); A("v_mul_u32_u24 v6, 1280, v6")
            A("v_lshl_add_u32 v6, v7, 4, v6"); A("v_cndmask_b32 v17, v19, v20, vcc"); A("v_add3_u32 v6, v6, v16, v17")
            if jj: A(f"v_subrev_u32 v{VW+jj}, {960*jj}, v6")
            else: A(f"v_mov_b32 v{VW}, v6")
    flags=opt.get('flags',False)
    def l_signal():
        A("s_mov_b64 exec, 1"); A("ds_add_u32 v21, v22"); A("v_add_u32 v21, 4, v21"); A("s_mov_b64 exec, -1")
    lwn=[0]
    def l_waitc():
        n=lwn[0]; lwn[0]+=1
        A(f"L_lw{n}:"); A("ds_read_b32 v24, v23"); A("s_waitcnt lgkmcnt(0)"); A("v_readfirstlane_b32 s50, v24"); A("s_nop 0")
        A("s_cmp_eq_u32 s50, 4"); A(f"s_cbranch_scc1 L_lx{n}")
        if opt.get('lsleep',1): A(f"s_sleep {opt.get('lsleep',1)}")
        A("s_sub_u32 s51, s51, 1"); A("s_cmp_gt_i32 s51, 0")
        A(f"s_cbranch_scc1 L_lw{n}"); A(f"L_lx{n}:"); A("v_add_u32 v23, 4, v23")
    lst=opt.get('lstamp',False)
    def ls(k):
        if lst: A(f"s_memtime s[{62+2*k}:{63+2*k}]")
    xfirst=opt.get('xfirst',True)
    if not xfirst: w_addr()
    ls(1)
    A("s_waitcnt lgkmcnt(0)")
    ls(2)
    if early==2:
        A("s_cmp_lt_u32 s85, 4"); A("s_cbranch_scc1 L_early")
    A("s_mov_b32 s20, s4"); A("s_mov_b32 s21, s5"); A("s_mov_b32 s24, s6"); A("s_mov_b32 s25, s7")
    dma_x(0,0); dma_x(0,1); adv_x()
    ls(3)
    if early==2:
        A("s_branch L_loader2")
        A("L_early:")
        A("s_lshr_b32 s35, s32, 1"); A("s_and_b32 s36, s32, 1")
        emit_params(); emit_touch()
        A("s_branch L_compute")
        A("L_loader2:")
    if xfirst: w_addr()
    dma_w(0)
    ls(4)
    ramp=opt.get('ramp',0)
    if ramp==0:
        dma_w(WSLOT); dma_x(XSLOT,0); dma_w(2*WSLOT)
        ls(5); A("s_waitcnt vmcnt(12)"); ls(6); A("s_barrier")
        dma_x(XSLOT,1); adv_x(); dma_w(3*WSLOT)
        ls(7); A("s_waitcnt vmcnt(16)"); ls(8)
        if flags:
            A(f"v_mov_b32 v21, {FL+4}"); A("v_mov_b32 v22, 1"); A(f"v_mov_b32 v23, {FC}"); A("s_mov_b32 s51, 0x100000"); l_signal()
        else: A("s_barrier")
        ls(9); dma_x(2*XSLOT,0)
    elif ramp==1:
        dma_w(WSLOT)
        ls(5); A("s_waitcnt vmcnt(4)"); ls(6); A("s_barrier")
        dma_x(XSLOT,0); dma_w(2*WSLOT)
        ls(7); A("s_waitcnt vmcnt(8)"); ls(8); A("s_barrier")
        ls(9); dma_x(XSLOT,1); adv_x(); dma_w(3*WSLOT); dma_x(2*XSLOT,0)
    elif ramp==2:
        dma_w(WSLOT); dma_x(XSLOT,0)
        ls(5); A("s_waitcnt vmcnt(8)"); ls(6); A("s_barrier")
        dma_w(2*WSLOT); dma_x(XSLOT,1); adv_x()
        ls(7); A("s_waitcnt vmcnt(12)"); ls(8); A("s_barrier")
        ls(9); dma_w(3*WSLOT); dma_x(2*XSLOT,0)
    elif ramp==4:
        dma_w(WSLOT); dma_x(XSLOT,0); dma_w(2*WSLOT)
        ls(5); A("s_waitcnt vmcnt(12)"); ls(6); A("s_barrier")
        ls(7); A("s_waitcnt vmcnt(8)"); ls(8); A("s_barrier")
        ls(9); dma_x(XSLOT,1); adv_x(); dma_w(3*WSLOT); dma_x(2*XSLOT,0)
    elif ramp==5:
        dma_w(WSLOT); dma_x(XSLOT,0)
        ls(5); A("s_waitcnt vmcnt(8)"); ls(6); A("s_barrier")
        dma_w(2*WSLOT)
        ls(7); A("s_waitcnt vmcnt(8)"); ls(8); A("s_barrier")
        ls(9); dma_x(XSLOT,1); adv_x(); dma_w(3*WSLOT); dma_x(2*XSLOT,0)
    elif ramp==6:
        dma_w(WSLOT)
        ls(5); A("s_waitcnt vmcnt(4)"); ls(6); A("s_barrier")
        dma_x(XSLOT,0)
        ls(7); A("s_waitcnt vmcnt(4)"); ls(8); A("s_barrier")
        ls(9); dma_w(2*WSLOT); dma_x(XSLOT,1); adv_x(); dma_w(3*WSLOT); dma_x(2*XSLOT,0)
    elif ramp==7:
        dma_w(WSLOT); dma_x(XSLOT,0)
        ls(5); A("s_waitcnt vmcnt(8)"); ls(6); A("s_barrier")
        dma_w(2*WSLOT)
        ls(7); A("s_waitcnt vmcnt(8)"); ls(8); A("s_barrier")
        ls(9); dma_x(XSLOT,1); adv_x()
    elif ramp==3:
        ls(5); A("s_waitcnt vmcnt(0)"); ls(6); A("s_barrier")
        dma_w(WSLOT); dma_x(XSLOT,0)
        ls(7); A("s_waitcnt vmcnt(4)"); ls(8); A("s_barrier")
        ls(9); dma_w(2*WSLOT); dma_x(XSLOT,1); adv_x(); dma_w(3*WSLOT); dma_x(2*XSLOT,0)
    def sync_end(n):
        A(f"s_waitcnt vmcnt({n})")
        if flags: l_signal()
        else: A("s_barrier")
    if ramp==7:
        A(f"s_mov_b32 s47, {2*XSLOT}"); A(f"s_mov_b32 s55, {3*WSLOT}"); A("s_mov_b32 s39, 0")
        A("L_ldloop:")
        dma_w("s55"); A(f"s_add_u32 s55, s55, {WSLOT}"); A(f"s_and_b32 s55, s55, {4*WSLOT-1}")
        dma_x("s47",0)
        sync_end(8)
        dma_w("s55"); A(f"s_add_u32 s55, s55, {WSLOT}")
        dma_x("s47",1); adv_x()
        A(f"s_add_u32 s47, s47, {XSLOT}"); A(f"s_cmp_eq_u32 s47, {3*XSLOT}"); A("s_cselect_b32 s47, 0, s47")
        A("s_add_u32 s39, s39, 1"); A("s_cmp_lt_u32 s39, 8")
        sync_end(8)
        A("s_cbranch_scc1 L_ldloop")
        dma_w("s55")
        sync_end(4); sync_end(0)
    else:
        A(f"s_mov_b32 s47, {2*XSLOT}"); A("s_mov_b32 s55, 0"); A("s_mov_b32 s39, 0")
        A("L_ldloop:")
        if flags: l_waitc()
        dma_w("s55"); A(f"s_add_u32 s55, s55, {WSLOT}")
        dma_x("s47",1); adv_x()
        A(f"s_add_u32 s47, s47, {XSLOT}"); A(f"s_cmp_eq_u32 s47, {3*XSLOT}"); A("s_cselect_b32 s47, 0, s47")
        sync_end(16)
        if flags: l_waitc()
        dma_w("s55"); A(f"s_add_u32 s55, s55, {WSLOT}"); A(f"s_and_b32 s55, s55, {4*WSLOT-1}")
        dma_x("s47",0)
        A("s_add_u32 s39, s39, 1")
        if not flags: A("s_cmp_lt_u32 s39, 7")
        sync_end(16)
        if flags: A("s_cmp_lt_u32 s39, 7")
        A("s_cbranch_scc1 L_ldloop")
        if flags: l_waitc()
        dma_w("s55"); A(f"s_add_u32 s55, s55, {WSLOT}")
        dma_x("s47",1)
        sync_end(16)
        if flags: l_waitc()
        dma_w("s55")
        sync_end(12); sync_end(4); sync_end(0)
    if lst:
        A("s_load_dwordx2 s[18:19], s[0:1], 64"); A("s_waitcnt lgkmcnt(0)")
        A("s_cmp_eq_u32 s32, 0"); A("s_cbranch_scc0 L_end")
        A("s_lshl_b32 s44, s2, 8"); A("s_add_u32 s44, s44, 65536"); A("s_add_u32 s18, s18, s44"); A("s_addc_u32 s19, s19, 0")
        A("v_mov_b32 v1, 0")
        for k in range(10):
            A(f"v_mov_b32 v2, s{62+2*k}"); A(f"global_store_dword v1, v2, s[18:19] offset:{k*4}")
    A("s_endpgm")
    A("L_compute:")
    if not early:
        A("s_load_dwordx4 s[8:11], s[0:1], 16")
        A("s_load_dwordx4 s[12:15], s[0:1], 32")
    A("s_load_dwordx2 s[16:17], s[0:1], 48")
    if stamps: A(f"s_load_dwordx2 s[18:19], s[0:1], {56 if stamps=='dbg' else 64}")
    A("s_lshr_b32 s35, s32, 1"); A("s_and_b32 s36, s32, 1")
    A("v_lshrrev_b32 v10, 4, v0"); A("v_and_b32 v11, 15, v0")
    if opt.get('ctouch',0)==1:
        nb=opt.get('ctouch')
        A("s_getpc_b64 s[54:55]"); A("L_pc:")
        A(f"s_sub_u32 s54, s54, L_pc-{NAME}"); A("s_subb_u32 s55, s55, 0")
        A("s_lshl_b32 s45, s32, 13"); A("v_lshlrev_b32 v1, 7, v0"); A("v_add_u32 v1, s45, v1")
        A(f"v_cmp_gt_u32 vcc, L_end-{NAME}, v1"); A("s_and_saveexec_b64 s[56:57], vcc"); A("s_cbranch_execz L_noct")
        A(f"global_load_dword v{VD}, v1, s[54:55]")
        A("L_noct:"); A("s_mov_b64 exec, -1")
    if not early: emit_params()
    if not early: emit_touch()
    A("v_lshrrev_b32 v1, 1, v11"); A("v_xor_b32 v1, v1, v10"); A("v_lshlrev_b32 v1, 4, v1")
    A("v_lshl_add_u32 v1, v11, 7, v1")
    A("s_lshl_b32 s45, s35, 11"); A(f"s_add_u32 s45, s45, {XBASE}")
    A(f"v_add_u32 v{VXL}, s45, v1"); A(f"v_xor_b32 v{VXL+1}, 64, v{VXL}")
    A("v_lshrrev_b32 v1, 1, v10"); A("v_lshlrev_b32 v1, 4, v1"); A("v_and_b32 v4, 1, v10"); A("v_lshl_add_u32 v1, v4, 2, v1")
    A("v_bfe_u32 v4, v0, 2, 2"); A("v_add_u32 v1, v1, v4"); A("v_mul_u32_u24 v1, 160, v1")
    A("v_and_b32 v4, 3, v0"); A("v_lshl_add_u32 v1, v4, 3, v1")
    A(f"v_add_u32 v{VWE}, {WSLOT}, v1"); A(f"v_add_u32 v{VWO}, {2*WSLOT}, v1")
    A(f"v_mov_b32 v{VO5}, v1")
    for r in range(ACC,ACC+80): A(f"v_mov_b32 v{r}, 0")
    A(f"v_lshlrev_b32 v{VST}, 4, v10"); A(f"v_add_u32 v{VST}, {STB}, v{VST}")
    A("s_cmp_eq_u32 s32, 0"); A("s_cbranch_scc0 L_noparam2")
    A("s_mov_b32 exec_hi, 0xff")
    A("s_mov_b32 s52, 0xbfb8aa3b")
    A(f"s_waitcnt vmcnt({ntinit})")
    for e in range(2):
        def ex(dst,src):
            if e==0: A(f"v_lshlrev_b32 v{dst}, 16, v{src}")
            else: A(f"v_and_b32 v{dst}, 0xffff0000, v{src}")
        ex(96,93); A("v_add_f32 v96, 0x3727c5ac, v96"); A("v_rsq_f32 v96, v96")
        ex(97,94); ex(98,92); ex(99,95)
        A("v_mul_f32 v96, v96, v97"); A("v_fma_f32 v99, -v98, v96, v99")
        A(f"v_mul_f32 v{100+e}, s52, v96"); A(f"v_mul_f32 v{102+e}, s52, v99")
    A(f"v_lshlrev_b32 v1, 3, v0"); A(f"v_add_u32 v1, {STB}, v1")
    A("ds_write_b64 v1, v[100:101]"); A("ds_write_b64 v1, v[102:103] offset:320")
    A("s_mov_b64 exec, -1")
    A("L_noparam2:")
    if flags:
        A(f"v_lshlrev_b32 v1, 2, v0"); A(f"v_add_u32 v1, {FL}, v1"); A("v_mov_b32 v4, 0"); A("ds_write_b32 v1, v4")
        A("v_cmp_eq_u32 vcc, 0, v0"); A(f"v_lshlrev_b32 v1, 2, v0"); A(f"v_add_u32 v1, {FSCR}, v1"); A(f"v_mov_b32 v4, {FC}")
        A(f"v_cndmask_b32 v{VCA}, v1, v4, vcc"); A("v_mov_b32 v4, 4"); A(f"v_cndmask_b32 v{VCI}, 0, v4, vcc")
        A(f"v_mov_b32 v{VONE}, 1"); A(f"v_mov_b32 v{VFA}, {FL+4}")
    A("s_waitcnt lgkmcnt(0)")
    A("s_mov_b32 s28, s16"); A("s_mov_b32 s29, s17"); A("s_mov_b32 s30, 10485760"); A("s_mov_b32 s31, 0x20000")
    A("s_mov_b32 s52, 0x3fb8aa3b"); A("s_mov_b32 s53, 0x3fb8aa3b")
    stamp(1)
    A("s_cmp_eq_u32 s36, 1"); A("s_cbranch_scc1 L_dh1")
    for dh in range(2):
        if dh==1: A("L_dh1:")
        tiles=[0,1,4] if dh==0 else [2,3,4]
        s0=0 if dh==0 else 4
        def valid(s,k): return 0<=s+k-1<=7
        def grp(ti,sl):
            s=sl if ti<2 else s0+sl
            ko=opt.get('kord','fwd')
            if ko=='fwd': ks=[0,1,2]
            elif ko=='zig': ks=[0,1,2] if sl%2==0 else [2,1,0]
            elif ko=='bsh': ks=[1,0,2]
            elif ko=='bsh2': ks=[2,1,0] if False else [1,2,0]
            return [(ti,sl,s,k) for k in ks if valid(s,k)]
        mf=[m for ti in range(2) for s in range(8) for m in grp(ti,s)]+[m for sl in range(4) for m in grp(2,sl)]
        assert len(mf)==55
        def mfma(setn,m):
            ti,sl,s,k=m; a=acc(ti,sl)
            return f"v_mfma_f32_16x16x32_bf16 v[{a}:{a+3}], {fw(setn,k,ti)}, {fx(setn,s+k-1)}, v[{a}:{a+3}]"
        def reads(setn,vw):
            xs=[f"ds_read_b128 {fx(setn,f)}, v{VXA} offset:{f*4096}" for f in range(8)]
            ws=[]
            for ti in range(3):
                for k in range(3):
                    for hh in range(2):
                        c,r=fwreg(setn,k,ti); r+=hh*2
                        ws.append(f"ds_read_b64_tr_b16 {c}[{r}:{r+1}], v{vw} offset:{k*5120+hh*1280+tiles[ti]*32}")
            return xs+ws
        A("s_barrier")
        stamp(2)
        if touch:
            for st in tA:
                tstage(st,"s45")
                A(f"buffer_load_dword v{VD}, v{VT}, s[20:23], s45 offen {tf}")
        A(f"v_mov_b32 v{VXA}, v{VXL}")
        for i,r in enumerate(reads(0,VO5)):
            A(r)
            if i%10==9: A("s_waitcnt lgkmcnt(4)")
        A("s_lshl_b32 s45, s35, 4"); A("v_add_u32 v1, s45, v11"); A("v_mul_u32_u24 v1, 10240, v1")
        A("v_lshrrev_b32 v4, 1, v10"); A("v_lshl_add_u32 v1, v4, 4, v1"); A("v_and_b32 v4, 1, v10")
        A(f"v_lshl_add_u32 v{VO}, v4, 5, v1")
        if dh: A(f"v_add_u32 v{VO}, 64, v{VO}")
        A("v_mul_u32_u24 v4, 1280, v4"); A(f"v_add_u32 v{VO5}, v1, v4")
        A("s_mul_i32 s44, s33, 327680"); A("s_lshl_b32 s45, s34, 5"); A("s_add_u32 s43, s44, s45"); A("s_add_u32 s43, s43, 1024")
        A("s_lshl_b32 s45, s34, 7"); A("s_add_u32 s44, s44, s45")
        def c_check(tag):
            A(f"v_readfirstlane_b32 s50, v{VF}"); A(f"v_add_u32 v{VFA}, 4, v{VFA}")
            A("s_cmp_eq_u32 s50, 4"); A(f"s_cbranch_scc0 L_slow{tag}"); A(f"L_back{tag}:")
        def c_slow(tag):
            A(f"L_slow{tag}:"); A(f"ds_read_b32 v{VF}, v{VFA} offset:0".replace("offset:0","")) if False else None
            A(f"v_subrev_u32 v{VF}, 4, v{VFA}"); A(f"L_spin{tag}:"); A(f"ds_read_b32 v1, v{VF}"); A("s_waitcnt lgkmcnt(0)"); A("v_readfirstlane_b32 s50, v1"); A("s_nop 0")
            A("s_cmp_eq_u32 s50, 4"); A(f"s_cbranch_scc1 L_back{tag}")
            A("s_sub_u32 s51, s51, 1"); A("s_cmp_gt_i32 s51, 0"); A(f"s_cbranch_scc1 L_spin{tag}")
            if tag.endswith('o'): A("s_cmp_lt_u32 s39, 9") if False else None
            A(f"s_branch L_back{tag}")
        if flags:
            A(f"ds_read_b32 v{VF}, v{VFA}")
            A("s_waitcnt lgkmcnt(0)")
        else:
            A("s_waitcnt lgkmcnt(0)")
            A("s_barrier")
        def fl_gaps(tag,signal=True):
            g0=[f"ds_add_u32 v{VCA}, v{VONE}"] if signal else []
            g1=([f"v_add_u32 v{VCA}, v{VCI}, v{VCA}"] if signal else [])+[f"v_readfirstlane_b32 s50, v{VF}"]
            g2=[f"v_add_u32 v{VFA}, 4, v{VFA}", "s_cmp_eq_u32 s50, 4"]
            g3=[f"s_cbranch_scc0 L_slow{tag}", f"L_back{tag}:"]
            return [g0,g1,g2,g3]
        A("s_mov_b32 s39, 0"); A("s_mov_b32 s47, 0")
        if flags: A("s_mov_b32 s51, 0x100000")
        if opt.get('pstamp',False): A("s_mov_b32 m0, 0"); A("v_mov_b32 v10, 0")
        A(f"L_loop{dh}:")
        for par in range(2):
            cur=par; nxt=1-par
            pre=[]; book=[]
            if par==0:
                pre.append(f"v_add_u32 v{VXA}, s47, v{VXL+1}")
                vw=VWE
                book=[f"v_xor_b32 v{VWE}, 0x8000, v{VWE}", f"s_add_u32 s47, s47, {XSLOT}", f"s_cmp_eq_u32 s47, {3*XSLOT}", "s_cselect_b32 s47, 0, s47"]
                if touch:
                    book=book+[f"s_cmp_eq_u32 s39, {10-touch}", f"s_cselect_b32 s22, 0, s22",
                      f"buffer_load_dword v{VD}, v{VT}, s[20:23], s57 offen {tf}",
                      "s_add_u32 s57, s57, s48", "s_cmp_eq_u32 s57, s49", "s_cselect_b32 s57, 0, s57"]
            else:
                pre.append(f"v_add_u32 v{VXA}, s47, v{VXL}")
                vw=VWO
                book=[f"v_xor_b32 v{VWO}, 0x8000, v{VWO}", "s_add_u32 s39, s39, 1", "s_cmp_lt_u32 s39, 9"]
            rd=reads(nxt,vw)
            gaps=[[] for _ in range(55)]
            g=1
            if flags:
                fg=fl_gaps(f"{dh}{'eo'[par]}")
                for q in range(4): gaps[q]+=fg[q]
                gaps[3]+=pre
                g=4
            else: gaps[0]+=pre
            for r in rd:
                gaps[g].append(r); g+=1
            g=max(g,30)+4
            for b_ in book:
                gaps[g].append(b_); g+=1
            if flags: gaps[opt.get('fpos',50)].append(f"ds_read_b32 v{VF}, v{VFA}")
            bp=opt.get('bpos',None)
            if bp and not flags:
                gaps[bp[0]].append("s_waitcnt lgkmcnt(0)"); gaps[bp[1]].append("s_barrier")
            if opt.get('pstamp',False): A("s_memtime s[86:87]")
            for i,m in enumerate(mf):
                A(mfma(cur,m))
                for x in gaps[i]: A(x)
            if not (bp and not flags): A("s_waitcnt lgkmcnt(0)")
            if opt.get('pstamp',False):
                if bp: A("s_waitcnt lgkmcnt(0)")
                A("v_writelane_b32 v10, s86, m0"); A("s_add_u32 m0, m0, 1")
                if par==1: A("s_cmp_lt_u32 s39, 9")
            if not flags and not bp: A("s_barrier")
        A(f"s_cbranch_scc1 L_loop{dh}")
        if flags:
            A(f"s_branch L_tail{dh}")
            for tag in (f"{dh}e",f"{dh}o",f"{dh}t"): c_slow(tag)
            A(f"L_tail{dh}:")
        stamp(3)
        def K(setn,ti_list,sl): return [mfma(setn,m) for ti in ti_list for m in grp(ti,sl)]
        K18=lambda s: K(0,(0,1),s)
        K19=lambda s: K(1,(0,1),s)
        T18=lambda sl: K(0,(2,),sl)
        T19=lambda sl: K(1,(2,),sl)
        ph1=K18(0)+K18(1)+K18(2)+K18(3)+K18(4)
        rd=[f"v_add_u32 v{VXA}, s47, v{VXL+1}"]+reads(1,VWE)
        st=[]
        for ti in range(2):
            st.append(f"ds_read_b128 v[{SR+ti*4}:{SR+ti*4+3}], v{VST} offset:{tiles[ti]*64}")
            st.append(f"ds_read_b128 v[{TR+ti*4}:{TR+ti*4+3}], v{VST} offset:{320+tiles[ti]*64}")
        rd=rd+st
        g0=0
        pg=[[] for _ in ph1]
        if flags:
            fg=fl_gaps(f"{dh}t",signal=False)
            for q in range(4): pg[q]+=fg[q]
            g0=3
        nslots=len(ph1)-g0-4
        ri=0
        for i in range(g0,len(ph1)):
            rem=len(rd)-ri; left=max(1,len(ph1)-3-i)
            k=min(rem,2 if rem>left else 1)
            for _ in range(k): pg[i].append(rd[ri]); ri+=1
        assert ri==len(rd)
        for i,m in enumerate(ph1):
            A(m)
            for x in pg[i]: A(x)
        A("s_waitcnt lgkmcnt(0)")
        for m in K19(0): A(m)
        slots=[K19(1)+K18(5)[:3], K19(2)+K18(5)[3:], K19(3)+K18(6)[:3], K19(4)+K18(6)[3:],
               K19(5)+K18(7)[:2], K19(6)+K18(7)[2:], K19(7)+T18(0)+T18(1), T19(0)+T19(1)+T18(2),
               T19(2)+T18(3)+T19(3), []]
        assert sum(len(x) for x in slots)+len(ph1)+len(K19(0))==110
        S4=acc(1,0); T4=acc(1,1)
        def epi_head(a,Sa,Ta,b,Sb,Tb):
            o=[]
            for (r,S,T) in ((a,Sa,Ta),(b,Sb,Tb)):
                for h in range(2):
                    o.append(f"v_pk_fma_f32 v[{r+2*h}:{r+2*h+1}], v[{r+2*h}:{r+2*h+1}], v[{S+2*h}:{S+2*h+1}], v[{T+2*h}:{T+2*h+1}]")
            return o
        def epi_body(a,b,mfl,extra,pend=None):
            o=[]
            tr=[f"v_exp_f32 v{E+i}, v{r}" for i,r in enumerate([a,a+1,a+2,a+3,b,b+1,b+2,b+3])]
            mid=[f"v_pk_fma_f32 v[{E+2*h}:{E+2*h+1}], v[{E+2*h}:{E+2*h+1}], s[52:53], s[52:53]" for h in range(4)]
            tr2=[f"v_rcp_f32 v{E+i}, v{E+i}" for i in range(8)]
            mfl=list(mfl) if not opt.get('nomf',False) else []
            n=len(mfl)
            pos=sorted(opt.get('mpos',[0,2,4,8,10,12,1,9,3,11,5,13,6,14])[:n])
            mi=0
            for i,t in enumerate(tr+tr2):
                if i==8: o+=mid
                if i in pos: o.append(mfl[mi]); mi+=1
                o.append(t)
                if pend and i==opt.get('spos',5): o.append(pend)
            o+=extra
            for h,r in enumerate([a,a+2,b,b+2]):
                o.append(f"v_pk_mul_f32 v[{r}:{r+1}], v[{r}:{r+1}], v[{E+2*h}:{E+2*h+1}] neg_lo:[1,0] neg_hi:[1,0]")
            o.append(f"v_cvt_pk_bf16_f32 v{a}, v{a}, v{a+1}"); o.append(f"v_cvt_pk_bf16_f32 v{a+1}, v{a+2}, v{a+3}")
            o.append(f"v_cvt_pk_bf16_f32 v{a+2}, v{b}, v{b+1}"); o.append(f"v_cvt_pk_bf16_f32 v{a+3}, v{b+2}, v{b+3}")
            return o
        def epi_tail(a,vo,sfl,sreg):
            o=[f"v_permlane16_swap_b32 v{a}, v{a+2}", f"v_permlane16_swap_b32 v{a+1}, v{a+3}"]
            if not opt.get('nostore',False): o.append(f"buffer_store_dwordx4 v[{a}:{a+3}], v{vo}, s[28:31], s{sreg} offen {sfl}")
            return o
        items=[(acc(0,s),SR,TR,acc(1,s),SR+4,TR+4,VO,s*1280,"s44",sf) for s in range(8)]
        items+=[(acc(2,2*sp),S4,T4,acc(2,2*sp+1),S4,T4,VO5,(s0+2*sp)*1280,"s43",sf5) for sp in range(2)]
        A("s_nop 3"); A("s_nop 3")
        for x in epi_head(*items[0][:6]): A(x)
        pend=None
        for i,it in enumerate(items):
            a,Sa,Ta,b,Sb,Tb,vo,soff,sbase,sfl=it
            extra=[]
            if i==2:
                extra=[f"ds_read_b128 v[{S4}:{S4+3}], v{VST} offset:{4*64}", f"ds_read_b128 v[{T4}:{T4+3}], v{VST} offset:{320+4*64}"]
            for x in epi_body(a,b,slots[i],extra+[f"s_add_u32 s{45+(i&1)}, {sbase}, {soff}"],pend): A(x)
            pend=None
            if i==7: A("s_waitcnt lgkmcnt(0)")
            if i+1<len(items):
                for x in epi_head(*items[i+1][:6]): A(x)
            else: A("s_nop 1")
            tl=epi_tail(a,vo,sfl,45+(i&1))
            if opt.get('spos',5)>=0 and i+1<len(items) and not opt.get('nostore',False):
                pend=tl.pop()
            for x in tl: A(x)
        if stamps:
            stamp(4)
            A("s_waitcnt vmcnt(0)")
            stamp(5)
            A("s_waitcnt lgkmcnt(0)")
            A(f"s_cmp_eq_u32 s32, {opt.get('stampwave',0)}"); A("s_cbranch_scc0 L_end")
            A("v_mov_b32 v1, 0")
            if stamps=='dbg':
                A(f"s_cmp_eq_u32 s2, {opt.get('dbgwg',77)}"); A("s_cbranch_scc0 L_end")
                A("s_mov_b64 exec, 1")
                for k in range(5):
                    a=60+4*k
                    A(f"s_sub_u32 s44, s{a+4}, s{a}"); A(f"s_sub_u32 s45, s{a+6}, s{a+2}")
                    A("v_mov_b32 v2, s44"); A("v_mov_b32 v3, s45"); A(f"global_store_dwordx2 v1, v[2:3], s[18:19] offset:{k*8}"); A("s_nop 1")
            else:
                if opt.get('pstamp',False):
                    A("v_writelane_b32 v10, s74, m0")
                    A("s_lshl_b32 s44, s2, 8"); A("s_add_u32 s44, s44, 65536"); A("v_lshlrev_b32 v4, 2, v0"); A("v_add_u32 v4, s44, v4")
                    A("global_store_dword v4, v10, s[18:19]")
                A("s_mul_i32 s44, s2, 96"); A("s_add_u32 s18, s18, s44"); A("s_addc_u32 s19, s19, 0")
                for k,a in enumerate(range(60,84,2)):
                    A(f"v_mov_b32 v2, s{a}"); A(f"v_mov_b32 v3, s{a+1}"); A(f"global_store_dwordx2 v1, v[2:3], s[18:19] offset:{k*8}"); A("s_nop 1")
        if dh==0: A("s_endpgm")
    A("L_end:"); A("s_endpgm")
    A('.section .rodata,"a"'); A(".p2align 6"); A(f".amdhsa_kernel {NAME}")
    A(f"  .amdhsa_next_free_vgpr {NV+NA}"); A("  .amdhsa_next_free_sgpr 96"); A(f"  .amdhsa_accum_offset {NV}")
    A("  .amdhsa_group_segment_fixed_size 0"); A("  .amdhsa_kernarg_size 72"); A("  .amdhsa_user_sgpr_count 2")
    A("  .amdhsa_user_sgpr_kernarg_segment_ptr 1"); A("  .amdhsa_system_sgpr_workgroup_id_x 1"); A(".end_amdhsa_kernel")
    return "\n".join(L)+"\n"
if __name__=="__main__":
    opt={}
    for a in sys.argv[2:]:
        k,v=a.split('=',1); opt[k]=eval(v)
    open(sys.argv[1],"w").write(gen(opt))
```

```python
import sys
NAME="standalone__batchnorm__sampling_kernel"
HEADER=open('standalone__batchnorm__sampling.s.ref').read().split('; Override launch')[0]

WSLOT=16384; XBASE=65536; XSLOT=32768; LDS_BYTES=163840; STB=15424
VXL=2; VXA=4; VWE=5; VWO=6; VO=7; VO5=8; VST=9
ACC=12; WV=92; VT=128; VD=129
SR=130; TR=138; E=146
FL=31808; FC=FL+128; FSCR=FL+256
VF=130; VFA=131; VCA=132; VCI=133; VONE=134
NV=156; NA=100
def acc(ti,s): return ACC+((ti*8+s)*4)
def fx(setn,f): return f"a[{setn*68+f*4}:{setn*68+f*4+3}]"
def fwreg(setn,k,ti):
    idx=(ti*3+k)*4
    return ('a',32+idx) if setn==0 else ('v',WV+idx)
def fw(setn,k,ti):
    c,r=fwreg(setn,k,ti); return f"{c}[{r}:{r+3}]"

def gen(opt):
    L=[]; A=L.append
    stamps=opt.get('stamps',False)
    xf=opt.get('xf',''); wf=opt.get('wf',''); sf=opt.get('sf','sc1'); sf5=opt.get('sf5','')
    touch=opt.get('touch',3); tinit=opt.get('tinit',[1,2]); tA=opt.get('tA',[]); tf=opt.get('tf','')
    def stamp(k):
        if stamps: A(f"s_memrealtime s[{60+4*k}:{61+4*k}]"); A(f"s_memtime s[{62+4*k}:{63+4*k}]")
    def tstage(st,dst):
        A(f"s_add_u32 {dst}, s84, {st}"); A(f"s_cmp_ge_u32 {dst}, 10"); A("s_cselect_b32 s46, 10, 0"); A(f"s_sub_u32 {dst}, {dst}, s46"); A(f"s_mul_i32 {dst}, {dst}, s48")
    early=opt.get('early',False)
    def emit_params():
        A("s_cmp_eq_u32 s32, 0"); A("s_cbranch_scc0 L_noparam")
        A("s_lshl_b32 s44, s34, 7"); A("s_lshl_b32 s46, s34, 5"); A("s_add_u32 s46, s46, 896")
        A("v_cmp_gt_u32 vcc, 32, v0"); A("v_mov_b32 v4, s46"); A("v_mov_b32 v12, s44"); A("v_lshlrev_b32 v1, 2, v0"); A("v_cndmask_b32 v4, v4, v12, vcc"); A("v_add_u32 v1, v4, v1")
        A("s_mov_b32 exec_hi, 0xff")
        A("s_waitcnt lgkmcnt(0)")
        for pi,sp in enumerate(["s[8:9]","s[10:11]","s[12:13]","s[14:15]"]):
            A(f"global_load_dword v{92+pi}, v1, {sp}")
        A("s_mov_b64 exec, -1")
        A("L_noparam:")

    ntinit=len(tinit) if touch else 0
    def emit_touch():
        if touch:
            A("s_cmp_eq_u32 s36, 1"); A("s_cbranch_scc1 L_tw")
            A("s_lshl_b32 s45, s35, 4"); A(f"v_add_u32 v{VT}, s45, v0")
            A(f"v_lshrrev_b32 v4, 3, v{VT}"); A(f"v_and_b32 v{VT}, 7, v{VT}"); A(f"v_mul_u32_u24 v{VT}, 1280, v{VT}")
            A("s_lshl_b32 s45, s34, 2"); A("v_add_u32 v4, s45, v4"); A("v_mul_u32_u24 v4, 10240, v4"); A(f"v_add_u32 v{VT}, v{VT}, v4")
            A("s_mul_i32 s45, s33, 327680"); A(f"v_add_u32 v{VT}, s45, v{VT}")
            A("v_cmp_gt_u32 vcc, 16, v0"); A("s_mov_b32 s48, 128"); A("s_mov_b32 s49, 1280")
            A("s_waitcnt lgkmcnt(0)")
            A("s_mov_b32 s20, s4"); A("s_mov_b32 s21, s5"); A("s_mov_b32 s22, 10485760")
            A("s_branch L_tj")
            A("L_tw:")
            A("s_lshr_b32 s45, s2, 3"); A("s_mul_i32 s45, s45, 60"); A("s_mul_i32 s46, s35, 30"); A("s_add_u32 s45, s45, s46")
            A(f"v_add_u32 v{VT}, s45, v0"); A(f"v_mul_u32_u24 v4, 0xcccd, v{VT}"); A("v_lshrrev_b32 v4, 19, v4")
            A(f"v_mul_u32_u24 v1, 10, v4"); A(f"v_sub_u32 v{VT}, v{VT}, v1"); A(f"v_lshlrev_b32 v{VT}, 7, v{VT}")
            A("v_lshrrev_b32 v1, 6, v4"); A("v_and_b32 v4, 63, v4"); A("v_mul_u32_u24 v1, 819200, v1"); A("v_mul_u32_u24 v4, 1280, v4")
            A(f"v_add3_u32 v{VT}, v{VT}, v1, v4")
            A("v_cmp_gt_u32 vcc, 30, v0"); A("s_mov_b32 s48, 81920"); A("s_mov_b32 s49, 819200")
            A("s_waitcnt lgkmcnt(0)")
            A("s_mov_b32 s20, s6"); A("s_mov_b32 s21, s7"); A("s_mov_b32 s22, 2457600")
            A("L_tj:")
            A("s_mov_b32 s23, 0x20000")
            A("v_mov_b32 v4, 0x7ff00000"); A(f"v_cndmask_b32 v{VT}, v4, v{VT}, vcc")
            wfirst=opt.get('wfirst',0)
            if wfirst:
                per=1920//wfirst//2
                nin=(per+59)//60
                A("s_cmp_eq_u32 s36, 1"); A("s_cbranch_scc0 L_tnorm")
                A("s_lshr_b32 s45, s2, 3"); A(f"s_cmp_lt_u32 s45, {wfirst}"); A("s_cbranch_scc0 L_tdone")
                A(f"s_mul_i32 s45, s45, {2*per}"); A(f"s_mul_i32 s46, s35, {per}"); A("s_add_u32 s50, s45, s46")
                for q in range(nin):
                    A(f"s_add_u32 s45, s50, {60*q}")
                    A("v_add_u32 v5, s45, v0"); A("v_mul_u32_u24 v4, 0xcccd, v5"); A("v_lshrrev_b32 v4, 19, v4")
                    A("v_mul_u32_u24 v1, 10, v4"); A("v_sub_u32 v5, v5, v1"); A("v_lshlrev_b32 v5, 7, v5")
                    A("v_lshrrev_b32 v1, 6, v4"); A("v_and_b32 v4, 63, v4"); A("v_mul_u32_u24 v1, 819200, v1"); A("v_mul_u32_u24 v4, 1280, v4")
                    A(f"v_add3_u32 v{6+q}, v5, v1, v4")
                    A(f"v_cmp_gt_u32 vcc, {min(60,per-60*q)}, v0"); A("v_mov_b32 v4, 0x7ff00000"); A("s_nop 0"); A(f"v_cndmask_b32 v{6+q}, v4, v{6+q}, vcc")
                for st in tinit:
                    tstage(st,"s45")
                    for q in range(nin): A(f"buffer_load_dword v{VD}, v{6+q}, s[20:23], s45 offen {tf}")
                A("s_branch L_tdone")
                A("L_tnorm:")
            tw=opt.get('tinitw',tinit)
            for st in sorted(set(tinit)|set(tw)):
                skip=None
                if st not in tw: skip=1
                elif st not in tinit: skip=0
                if skip is not None: A(f"s_cmp_eq_u32 s36, {skip}"); A(f"s_cbranch_scc1 L_tsk{st}")
                tstage(st,"s45")
                A(f"buffer_load_dword v{VD}, v{VT}, s[20:23], s45 offen {tf}")
                if skip is not None: A(f"L_tsk{st}:")
            if wfirst: A("L_tdone:")
            tstage(touch,"s57")

    A(HEADER.rstrip())
    A(f"; @launch grid=(256,1,1) block=(512,1,1) lds={LDS_BYTES}")
    A('.amdgcn_target "amdgcn-amd-amdhsa--gfx950"')
    A(".text"); A(f".globl {NAME}"); A(".p2align 8"); A(f".type {NAME},@function"); A(f"{NAME}:")
    A("s_cmp_ge_u32 s2, 256"); A("s_cbranch_scc1 L_end")
    stamp(0)
    if early:
        A("s_load_dwordx8 s[4:11], s[0:1], 0"); A("s_load_dwordx4 s[12:15], s[0:1], 32")
    else: A("s_load_dwordx4 s[4:7], s[0:1], 0")
    if opt.get('ctouch',0)==2:
        A("s_getpc_b64 s[54:55]"); A("L_pc:")
        A("v_lshrrev_b32 v1, 6, v0"); A("v_and_b32 v2, 63, v0"); A("v_lshl_add_u32 v3, v1, 4, v2"); A("v_lshlrev_b32 v3, 7, v3")
        A(f"s_sub_u32 s54, s54, L_pc-{NAME}"); A("s_subb_u32 s55, s55, 0")
        A(f"v_cmp_gt_u32 vcc, 16, v2"); A(f"v_cmp_gt_u32 s[56:57], s58, v3") if False else None
        A(f"v_min_u32 v3, L_end-{NAME}, v3")
        A("s_and_saveexec_b64 s[56:57], vcc")
        A(f"global_load_dword v{VD}, v3, s[54:55]")
        A("s_mov_b64 exec, -1")
    A("v_lshrrev_b32 v1, 6, v0"); A("v_and_b32 v0, 63, v0")
    A("s_and_b32 s33, s2, 7"); A("v_readfirstlane_b32 s32, v1")
    if opt.get('ctouch',0)==3:
        A("s_getpc_b64 s[54:55]"); A("L_pc:")
        A(f"s_sub_u32 s54, s54, L_pc-{NAME}"); A("s_subb_u32 s55, s55, 0")
        A("s_sub_u32 s56, s32, 2"); A("s_cmp_lt_u32 s56, 2"); A("s_cbranch_scc0 L_noct")
        A("s_lshl_b32 s56, s56, 13"); A("v_lshlrev_b32 v3, 7, v0"); A("v_add_u32 v3, s56, v3"); A(f"v_min_u32 v3, L_end-{NAME}, v3")
        A(f"global_load_dword v{VD}, v3, s[54:55]")
        A("L_noct:")
    A("s_lshr_b32 s34, s2, 3"); A("s_lshr_b32 s35, s34, 3"); A("s_and_b32 s34, s34, 7")
    if opt.get('rot',True):
        A("s_mul_i32 s84, s33, 5"); A("s_lshr_b32 s84, s84, 2")
    else: A("s_mov_b32 s84, 0")
    A("s_lshl_b32 s33, s33, 2"); A("s_add_u32 s33, s33, s35")
    if early==2:
        pass
    elif early:
        A("s_cmp_ge_u32 s32, 4"); A("s_cbranch_scc1 L_loader")
        A("s_lshr_b32 s35, s32, 1"); A("s_and_b32 s36, s32, 1")
        emit_params()
        emit_touch()
        A("s_branch L_compute")
        A("L_loader:")
    else:
        A("s_cmp_lt_u32 s32, 4"); A("s_cbranch_scc1 L_compute")
    VX=8; VW=12
    if early==2:
        A("s_mov_b32 s85, s32"); A("s_and_b32 s32, s32, 3")
    else: A("s_sub_u32 s32, s32, 4")
    A("v_lshrrev_b32 v2, 4, v0"); A("v_lshrrev_b32 v5, 3, v0")
    A("v_and_b32 v6, 7, v0"); A("v_xor_b32 v6, v6, v2")
    A("v_mul_u32_u24 v5, 10240, v5")
    A("v_lshlrev_b32 v7, 4, v6"); A("v_xor_b32 v6, 4, v6"); A("v_lshlrev_b32 v6, 4, v6")
    A(f"v_add_u32 v{VX}, v5, v7")
    A(f"v_add_u32 v{VX+1}, v5, v6"); A(f"v_add_u32 v{VX+1}, {81920-1024}, v{VX+1}")
    A(f"v_add_u32 v{VX+2}, {2*(81920-1024)}, v{VX}")
    A(f"v_add_u32 v{VX+3}, {2*(81920-1024)}, v{VX+1}")
    A("s_mul_i32 s37, s33, 327680"); A("s_mul_i32 s45, s32, 1280"); A("s_add_u32 s37, s37, s45")
    A("s_add_u32 s59, s37, 5120")
    A("s_lshl_b32 s40, s32, 12"); A(f"s_add_u32 s40, s40, {XBASE}"); A("s_add_u32 s41, s40, 16384")
    A("s_mul_i32 s42, s32, 3840")
    A("s_lshl_b32 s58, s84, 7"); A("s_mul_i32 s38, s84, 81920")
    A("s_mov_b32 s22, 10485760"); A("s_mov_b32 s23, 0x20000"); A("s_mov_b32 s26, 2457600"); A("s_mov_b32 s27, 0x20000")
    def adv_x(): A("s_add_u32 s58, s58, 128"); A("s_cmp_eq_u32 s58, 1280"); A("s_cselect_b32 s58, 0, s58")
    def adv_w(): A("s_add_u32 s38, s38, 40960"); A("s_cmp_eq_u32 s38, 819200"); A("s_cselect_b32 s38, 0, s38")
    def dma_x(slotoff, h):
        A(f"s_add_u32 m0, s{40+h}, {slotoff}")
        A(f"s_add_u32 s56, s{59 if h else 37}, s58")
        for jj in range(4):
            A(f"buffer_load_dwordx4 v{VX+jj}, s[20:23], s56 offen offset:{jj*1024} {xf} lds")
    def dma_w(slotoff):
        A(f"s_add_u32 m0, s42, {slotoff}")
        A("s_nop 0")
        for jj in range(4):
            A(f"buffer_load_dwordx4 v{VW+jj}, s[24:27], s38 offen offset:{jj*960} {wf} lds")
        adv_w()
    def w_addr():
        A("s_lshl_b32 s44, s34, 7"); A("s_lshl_b32 s46, s34, 5"); A("s_add_u32 s46, s46, 896"); A("s_mul_i32 s45, s32, 240")
        A("v_mov_b32 v19, s46"); A("v_mov_b32 v20, s44")
        for jj in range(4):
            A(f"v_add_u32 v5, s45, v0")
            if jj: A(f"v_add_u32 v5, {60*jj}, v5")
            A("v_mul_u32_u24 v6, 0xcccd, v5"); A("v_lshrrev_b32 v6, 19, v6")
            A("v_mul_u32_u24 v7, 10, v6"); A("v_sub_u32 v7, v5, v7")
            A("v_cmp_gt_u32 vcc, 8, v7")
            A("v_min_u32 v6, 95, v6")
            A("v_lshrrev_b32 v16, 5, v6"); A("v_and_b32 v6, 31, v6")
            A("v_and_b32 v17, 4, v6"); A("v_lshlrev_b32 v17, 1, v17"); A("v_and_b32 v18, 8, v6"); A("v_lshrrev_b32 v18, 1, v18")
            A("v_and_b32 v6, 0x13, v6"); A("v_or3_b32 v6, v6, v17, v18")
            A("v_mul_u32_u24 v16, 819200, v16"); A("v_mul_u32_u24 v6, 1280, v6")
            A("v_lshl_add_u32 v6, v7, 4, v6"); A("v_cndmask_b32 v17, v19, v20, vcc"); A("v_add3_u32 v6, v6, v16, v17")
            if jj: A(f"v_subrev_u32 v{VW+jj}, {960*jj}, v6")
            else: A(f"v_mov_b32 v{VW}, v6")
    flags=opt.get('flags',False)
    def l_signal():
        A("s_mov_b64 exec, 1"); A("ds_add_u32 v21, v22"); A("v_add_u32 v21, 4, v21"); A("s_mov_b64 exec, -1")
    lwn=[0]
    def l_waitc():
        n=lwn[0]; lwn[0]+=1
        A(f"L_lw{n}:"); A("ds_read_b32 v24, v23"); A("s_waitcnt lgkmcnt(0)"); A("v_readfirstlane_b32 s50, v24"); A("s_nop 0")
        A("s_cmp_eq_u32 s50, 4"); A(f"s_cbranch_scc1 L_lx{n}")
        if opt.get('lsleep',1): A(f"s_sleep {opt.get('lsleep',1)}")
        A("s_sub_u32 s51, s51, 1"); A("s_cmp_gt_i32 s51, 0")
        A(f"s_cbranch_scc1 L_lw{n}"); A(f"L_lx{n}:"); A("v_add_u32 v23, 4, v23")
    lst=opt.get('lstamp',False)
    def ls(k):
        if lst: A(f"s_memtime s[{62+2*k}:{63+2*k}]")
    xfirst=opt.get('xfirst',True)
    if not xfirst: w_addr()
    ls(1)
    A("s_waitcnt lgkmcnt(0)")
    ls(2)
    if early==2:
        A("s_cmp_lt_u32 s85, 4"); A("s_cbranch_scc1 L_early")
    A("s_mov_b32 s20, s4"); A("s_mov_b32 s21, s5"); A("s_mov_b32 s24, s6"); A("s_mov_b32 s25, s7")
    dma_x(0,0); dma_x(0,1); adv_x()
    ls(3)
    if early==2:
        A("s_branch L_loader2")
        A("L_early:")
        A("s_lshr_b32 s35, s32, 1"); A("s_and_b32 s36, s32, 1")
        emit_params(); emit_touch()
        A("s_branch L_compute")
        A("L_loader2:")
    if xfirst: w_addr()
    dma_w(0)
    ls(4)
    ramp=opt.get('ramp',0)
    if ramp==0:
        dma_w(WSLOT); dma_x(XSLOT,0); dma_w(2*WSLOT)
        ls(5); A("s_waitcnt vmcnt(12)"); ls(6); A("s_barrier")
        dma_x(XSLOT,1); adv_x(); dma_w(3*WSLOT)
        ls(7); A("s_waitcnt vmcnt(16)"); ls(8)
        if flags:
            A(f"v_mov_b32 v21, {FL+4}"); A("v_mov_b32 v22, 1"); A(f"v_mov_b32 v23, {FC}"); A("s_mov_b32 s51, 0x100000"); l_signal()
        else: A("s_barrier")
        ls(9); dma_x(2*XSLOT,0)
    elif ramp==1:
        dma_w(WSLOT)
        ls(5); A("s_waitcnt vmcnt(4)"); ls(6); A("s_barrier")
        dma_x(XSLOT,0); dma_w(2*WSLOT)
        ls(7); A("s_waitcnt vmcnt(8)"); ls(8); A("s_barrier")
        ls(9); dma_x(XSLOT,1); adv_x(); dma_w(3*WSLOT); dma_x(2*XSLOT,0)
    elif ramp==2:
        dma_w(WSLOT); dma_x(XSLOT,0)
        ls(5); A("s_waitcnt vmcnt(8)"); ls(6); A("s_barrier")
        dma_w(2*WSLOT); dma_x(XSLOT,1); adv_x()
        ls(7); A("s_waitcnt vmcnt(12)"); ls(8); A("s_barrier")
        ls(9); dma_w(3*WSLOT); dma_x(2*XSLOT,0)
    elif ramp==4:
        dma_w(WSLOT); dma_x(XSLOT,0); dma_w(2*WSLOT)
        ls(5); A("s_waitcnt vmcnt(12)"); ls(6); A("s_barrier")
        ls(7); A("s_waitcnt vmcnt(8)"); ls(8); A("s_barrier")
        ls(9); dma_x(XSLOT,1); adv_x(); dma_w(3*WSLOT); dma_x(2*XSLOT,0)
    elif ramp==5:
        dma_w(WSLOT); dma_x(XSLOT,0)
        ls(5); A("s_waitcnt vmcnt(8)"); ls(6); A("s_barrier")
        dma_w(2*WSLOT)
        ls(7); A("s_waitcnt vmcnt(8)"); ls(8); A("s_barrier")
        ls(9); dma_x(XSLOT,1); adv_x(); dma_w(3*WSLOT); dma_x(2*XSLOT,0)
    elif ramp==6:
        dma_w(WSLOT)
        ls(5); A("s_waitcnt vmcnt(4)"); ls(6); A("s_barrier")
        dma_x(XSLOT,0)
        ls(7); A("s_waitcnt vmcnt(4)"); ls(8); A("s_barrier")
        ls(9); dma_w(2*WSLOT); dma_x(XSLOT,1); adv_x(); dma_w(3*WSLOT); dma_x(2*XSLOT,0)
    elif ramp==7:
        dma_w(WSLOT); dma_x(XSLOT,0)
        ls(5); A("s_waitcnt vmcnt(8)"); ls(6); A("s_barrier")
        dma_w(2*WSLOT)
        ls(7); A("s_waitcnt vmcnt(8)"); ls(8); A("s_barrier")
        ls(9); dma_x(XSLOT,1); adv_x()
    elif ramp==3:
        ls(5); A("s_waitcnt vmcnt(0)"); ls(6); A("s_barrier")
        dma_w(WSLOT); dma_x(XSLOT,0)
        ls(7); A("s_waitcnt vmcnt(4)"); ls(8); A("s_barrier")
        ls(9); dma_w(2*WSLOT); dma_x(XSLOT,1); adv_x(); dma_w(3*WSLOT); dma_x(2*XSLOT,0)
    l2=opt.get('lstamp2',False)
    def st2():
        if l2:
            A("s_memtime s[86:87]"); A("s_waitcnt lgkmcnt(0)"); A("s_mov_b32 m0, s52"); A("v_writelane_b32 v30, s86, m0"); A("s_add_u32 s52, s52, 1")
    if l2: A("s_mov_b32 s52, 0"); A("v_mov_b32 v30, 0"); st2()
    def sync_end(n):
        st2()
        A(f"s_waitcnt vmcnt({n})")
        st2()
        if flags: l_signal()
        else: A("s_barrier")
        st2()
    if ramp==7:
        A(f"s_mov_b32 s47, {2*XSLOT}"); A(f"s_mov_b32 s55, {3*WSLOT}"); A("s_mov_b32 s39, 0")
        A("L_ldloop:")
        dma_w("s55"); A(f"s_add_u32 s55, s55, {WSLOT}"); A(f"s_and_b32 s55, s55, {4*WSLOT-1}")
        dma_x("s47",0)
        sync_end(8)
        dma_w("s55"); A(f"s_add_u32 s55, s55, {WSLOT}")
        dma_x("s47",1); adv_x()
        A(f"s_add_u32 s47, s47, {XSLOT}"); A(f"s_cmp_eq_u32 s47, {3*XSLOT}"); A("s_cselect_b32 s47, 0, s47")
        A("s_add_u32 s39, s39, 1"); A("s_cmp_lt_u32 s39, 8")
        sync_end(opt.get('oddw',8))
        if l2: A("s_cmp_lt_u32 s39, 8")
        A("s_cbranch_scc1 L_ldloop")
        dma_w("s55")
        sync_end(4); sync_end(0)
    else:
        A(f"s_mov_b32 s47, {2*XSLOT}"); A("s_mov_b32 s55, 0"); A("s_mov_b32 s39, 0")
        A("L_ldloop:")
        if flags: l_waitc()
        dma_w("s55"); A(f"s_add_u32 s55, s55, {WSLOT}")
        dma_x("s47",1); adv_x()
        A(f"s_add_u32 s47, s47, {XSLOT}"); A(f"s_cmp_eq_u32 s47, {3*XSLOT}"); A("s_cselect_b32 s47, 0, s47")
        sync_end(16)
        if flags: l_waitc()
        dma_w("s55"); A(f"s_add_u32 s55, s55, {WSLOT}"); A(f"s_and_b32 s55, s55, {4*WSLOT-1}")
        dma_x("s47",0)
        A("s_add_u32 s39, s39, 1")
        if not flags: A("s_cmp_lt_u32 s39, 7")
        sync_end(16)
        if flags: A("s_cmp_lt_u32 s39, 7")
        A("s_cbranch_scc1 L_ldloop")
        if flags: l_waitc()
        dma_w("s55"); A(f"s_add_u32 s55, s55, {WSLOT}")
        dma_x("s47",1)
        sync_end(16)
        if flags: l_waitc()
        dma_w("s55")
        sync_end(12); sync_end(4); sync_end(0)
    if l2:
        A("s_load_dwordx2 s[18:19], s[0:1], 64"); A("s_waitcnt lgkmcnt(0)")
        A(f"s_cmp_eq_u32 s32, {opt.get('l2wave',0)}"); A("s_cbranch_scc0 L_end")
        A("s_lshl_b32 s44, s2, 8"); A("s_add_u32 s44, s44, 65536"); A("v_lshlrev_b32 v4, 2, v0"); A("v_add_u32 v4, s44, v4")
        A("global_store_dword v4, v30, s[18:19]")
    if lst:
        A("s_load_dwordx2 s[18:19], s[0:1], 64"); A("s_waitcnt lgkmcnt(0)")
        A("s_cmp_eq_u32 s32, 0"); A("s_cbranch_scc0 L_end")
        A("s_lshl_b32 s44, s2, 8"); A("s_add_u32 s44, s44, 65536"); A("s_add_u32 s18, s18, s44"); A("s_addc_u32 s19, s19, 0")
        A("v_mov_b32 v1, 0")
        for k in range(10):
            A(f"v_mov_b32 v2, s{62+2*k}"); A(f"global_store_dword v1, v2, s[18:19] offset:{k*4}")
    A("s_endpgm")
    A("L_compute:")
    if not early:
        A("s_load_dwordx4 s[8:11], s[0:1], 16")
        A("s_load_dwordx4 s[12:15], s[0:1], 32")
    A("s_load_dwordx2 s[16:17], s[0:1], 48")
    if stamps: A(f"s_load_dwordx2 s[18:19], s[0:1], {56 if stamps=='dbg' else 64}")
    A("s_lshr_b32 s35, s32, 1"); A("s_and_b32 s36, s32, 1")
    A("v_lshrrev_b32 v10, 4, v0"); A("v_and_b32 v11, 15, v0")
    if opt.get('ctouch',0)==1:
        nb=opt.get('ctouch')
        A("s_getpc_b64 s[54:55]"); A("L_pc:")
        A(f"s_sub_u32 s54, s54, L_pc-{NAME}"); A("s_subb_u32 s55, s55, 0")
        A("s_lshl_b32 s45, s32, 13"); A("v_lshlrev_b32 v1, 7, v0"); A("v_add_u32 v1, s45, v1")
        A(f"v_cmp_gt_u32 vcc, L_end-{NAME}, v1"); A("s_and_saveexec_b64 s[56:57], vcc"); A("s_cbranch_execz L_noct")
        A(f"global_load_dword v{VD}, v1, s[54:55]")
        A("L_noct:"); A("s_mov_b64 exec, -1")
    if not early: emit_params()
    if not early: emit_touch()
    A("v_lshrrev_b32 v1, 1, v11"); A("v_xor_b32 v1, v1, v10"); A("v_lshlrev_b32 v1, 4, v1")
    A("v_lshl_add_u32 v1, v11, 7, v1")
    A("s_lshl_b32 s45, s35, 11"); A(f"s_add_u32 s45, s45, {XBASE}")
    A(f"v_add_u32 v{VXL}, s45, v1"); A(f"v_xor_b32 v{VXL+1}, 64, v{VXL}")
    A("v_lshrrev_b32 v1, 1, v10"); A("v_lshlrev_b32 v1, 4, v1"); A("v_and_b32 v4, 1, v10"); A("v_lshl_add_u32 v1, v4, 2, v1")
    A("v_bfe_u32 v4, v0, 2, 2"); A("v_add_u32 v1, v1, v4"); A("v_mul_u32_u24 v1, 160, v1")
    A("v_and_b32 v4, 3, v0"); A("v_lshl_add_u32 v1, v4, 3, v1")
    A(f"v_add_u32 v{VWE}, {WSLOT}, v1"); A(f"v_add_u32 v{VWO}, {2*WSLOT}, v1")
    A(f"v_mov_b32 v{VO5}, v1")
    for r in range(ACC,ACC+80): A(f"v_mov_b32 v{r}, 0")
    A(f"v_lshlrev_b32 v{VST}, 4, v10"); A(f"v_add_u32 v{VST}, {STB}, v{VST}")
    A("s_cmp_eq_u32 s32, 0"); A("s_cbranch_scc0 L_noparam2")
    A("s_mov_b32 exec_hi, 0xff")
    A("s_mov_b32 s52, 0xbfb8aa3b")
    A(f"s_waitcnt vmcnt({ntinit})")
    for e in range(2):
        def ex(dst,src):
            if e==0: A(f"v_lshlrev_b32 v{dst}, 16, v{src}")
            else: A(f"v_and_b32 v{dst}, 0xffff0000, v{src}")
        ex(96,93); A("v_add_f32 v96, 0x3727c5ac, v96"); A("v_rsq_f32 v96, v96")
        ex(97,94); ex(98,92); ex(99,95)
        A("v_mul_f32 v96, v96, v97"); A("v_fma_f32 v99, -v98, v96, v99")
        A(f"v_mul_f32 v{100+e}, s52, v96"); A(f"v_mul_f32 v{102+e}, s52, v99")
    A(f"v_lshlrev_b32 v1, 3, v0"); A(f"v_add_u32 v1, {STB}, v1")
    A("ds_write_b64 v1, v[100:101]"); A("ds_write_b64 v1, v[102:103] offset:320")
    A("s_mov_b64 exec, -1")
    A("L_noparam2:")
    if flags:
        A(f"v_lshlrev_b32 v1, 2, v0"); A(f"v_add_u32 v1, {FL}, v1"); A("v_mov_b32 v4, 0"); A("ds_write_b32 v1, v4")
        A("v_cmp_eq_u32 vcc, 0, v0"); A(f"v_lshlrev_b32 v1, 2, v0"); A(f"v_add_u32 v1, {FSCR}, v1"); A(f"v_mov_b32 v4, {FC}")
        A(f"v_cndmask_b32 v{VCA}, v1, v4, vcc"); A("v_mov_b32 v4, 4"); A(f"v_cndmask_b32 v{VCI}, 0, v4, vcc")
        A(f"v_mov_b32 v{VONE}, 1"); A(f"v_mov_b32 v{VFA}, {FL+4}")
    A("s_waitcnt lgkmcnt(0)")
    A("s_mov_b32 s28, s16"); A("s_mov_b32 s29, s17"); A("s_mov_b32 s30, 10485760"); A("s_mov_b32 s31, 0x20000")
    A("s_mov_b32 s52, 0x3fb8aa3b"); A("s_mov_b32 s53, 0x3fb8aa3b")
    stamp(1)
    A("s_cmp_eq_u32 s36, 1"); A("s_cbranch_scc1 L_dh1")
    for dh in range(2):
        if dh==1: A("L_dh1:")
        tiles=[0,1,4] if dh==0 else [2,3,4]
        s0=0 if dh==0 else 4
        def valid(s,k): return 0<=s+k-1<=7
        def grp(ti,sl):
            s=sl if ti<2 else s0+sl
            ko=opt.get('kord','fwd')
            if ko=='fwd': ks=[0,1,2]
            elif ko=='zig': ks=[0,1,2] if sl%2==0 else [2,1,0]
            elif ko=='bsh': ks=[1,0,2]
            elif ko=='bsh2': ks=[2,1,0] if False else [1,2,0]
            return [(ti,sl,s,k) for k in ks if valid(s,k)]
        mf=[m for ti in range(2) for s in range(8) for m in grp(ti,s)]+[m for sl in range(4) for m in grp(2,sl)]
        assert len(mf)==55
        def mfma(setn,m):
            ti,sl,s,k=m; a=acc(ti,sl)
            return f"v_mfma_f32_16x16x32_bf16 v[{a}:{a+3}], {fw(setn,k,ti)}, {fx(setn,s+k-1)}, v[{a}:{a+3}]"
        def reads(setn,vw):
            xs=[f"ds_read_b128 {fx(setn,f)}, v{VXA} offset:{f*4096}" for f in range(8)]
            ws=[]
            for ti in range(3):
                for k in range(3):
                    for hh in range(2):
                        c,r=fwreg(setn,k,ti); r+=hh*2
                        ws.append(f"ds_read_b64_tr_b16 {c}[{r}:{r+1}], v{vw} offset:{k*5120+hh*1280+tiles[ti]*32}")
            return xs+ws
        if opt.get('tsteady','xw')=='x' and dh==1 and touch: pass
        A("s_barrier")
        stamp(2)
        if touch:
            for st in tA:
                tstage(st,"s45")
                A(f"buffer_load_dword v{VD}, v{VT}, s[20:23], s45 offen {tf}")
        A(f"v_mov_b32 v{VXA}, v{VXL}")
        for i,r in enumerate(reads(0,VO5)):
            A(r)
            if i%10==9: A("s_waitcnt lgkmcnt(4)")
        A("s_lshl_b32 s45, s35, 4"); A("v_add_u32 v1, s45, v11"); A("v_mul_u32_u24 v1, 10240, v1")
        A("v_lshrrev_b32 v4, 1, v10"); A("v_lshl_add_u32 v1, v4, 4, v1"); A("v_and_b32 v4, 1, v10")
        A(f"v_lshl_add_u32 v{VO}, v4, 5, v1")
        if dh: A(f"v_add_u32 v{VO}, 64, v{VO}")
        A("v_mul_u32_u24 v4, 1280, v4"); A(f"v_add_u32 v{VO5}, v1, v4")
        A("s_mul_i32 s44, s33, 327680"); A("s_lshl_b32 s45, s34, 5"); A("s_add_u32 s43, s44, s45"); A("s_add_u32 s43, s43, 1024")
        A("s_lshl_b32 s45, s34, 7"); A("s_add_u32 s44, s44, s45")
        def c_check(tag):
            A(f"v_readfirstlane_b32 s50, v{VF}"); A(f"v_add_u32 v{VFA}, 4, v{VFA}")
            A("s_cmp_eq_u32 s50, 4"); A(f"s_cbranch_scc0 L_slow{tag}"); A(f"L_back{tag}:")
        def c_slow(tag):
            A(f"L_slow{tag}:"); A(f"ds_read_b32 v{VF}, v{VFA} offset:0".replace("offset:0","")) if False else None
            A(f"v_subrev_u32 v{VF}, 4, v{VFA}"); A(f"L_spin{tag}:"); A(f"ds_read_b32 v1, v{VF}"); A("s_waitcnt lgkmcnt(0)"); A("v_readfirstlane_b32 s50, v1"); A("s_nop 0")
            A("s_cmp_eq_u32 s50, 4"); A(f"s_cbranch_scc1 L_back{tag}")
            A("s_sub_u32 s51, s51, 1"); A("s_cmp_gt_i32 s51, 0"); A(f"s_cbranch_scc1 L_spin{tag}")
            if tag.endswith('o'): A("s_cmp_lt_u32 s39, 9") if False else None
            A(f"s_branch L_back{tag}")
        if flags:
            A(f"ds_read_b32 v{VF}, v{VFA}")
            A("s_waitcnt lgkmcnt(0)")
        else:
            A("s_waitcnt lgkmcnt(0)")
            A("s_barrier")
        def fl_gaps(tag,signal=True):
            g0=[f"ds_add_u32 v{VCA}, v{VONE}"] if signal else []
            g1=([f"v_add_u32 v{VCA}, v{VCI}, v{VCA}"] if signal else [])+[f"v_readfirstlane_b32 s50, v{VF}"]
            g2=[f"v_add_u32 v{VFA}, 4, v{VFA}", "s_cmp_eq_u32 s50, 4"]
            g3=[f"s_cbranch_scc0 L_slow{tag}", f"L_back{tag}:"]
            return [g0,g1,g2,g3]
        A("s_mov_b32 s39, 0"); A("s_mov_b32 s47, 0")
        if flags: A("s_mov_b32 s51, 0x100000")
        if opt.get('pstamp',False): A("s_mov_b32 m0, 0"); A("v_mov_b32 v10, 0")
        A(f"L_loop{dh}:")
        for par in range(2):
            cur=par; nxt=1-par
            pre=[]; book=[]
            if par==0:
                pre.append(f"v_add_u32 v{VXA}, s47, v{VXL+1}")
                vw=VWE
                book=[f"v_xor_b32 v{VWE}, 0x8000, v{VWE}", f"s_add_u32 s47, s47, {XSLOT}", f"s_cmp_eq_u32 s47, {3*XSLOT}", "s_cselect_b32 s47, 0, s47"]
                if touch and not (opt.get('tsteady','xw')=='x' and dh==1) and not (opt.get('tsteady','xw')=='w' and dh==0):
                    book=book+[f"s_cmp_eq_u32 s39, {10-touch}", f"s_cselect_b32 s22, 0, s22",
                      f"buffer_load_dword v{VD}, v{VT}, s[20:23], s57 offen {tf}",
                      "s_add_u32 s57, s57, s48", "s_cmp_eq_u32 s57, s49", "s_cselect_b32 s57, 0, s57"]
            else:
                pre.append(f"v_add_u32 v{VXA}, s47, v{VXL}")
                vw=VWO
                book=[f"v_xor_b32 v{VWO}, 0x8000, v{VWO}", "s_add_u32 s39, s39, 1", "s_cmp_lt_u32 s39, 9"]
            rd=reads(nxt,vw)
            gaps=[[] for _ in range(55)]
            g=1
            if flags:
                fg=fl_gaps(f"{dh}{'eo'[par]}")
                for q in range(4): gaps[q]+=fg[q]
                gaps[3]+=pre
                g=4
            else: gaps[0]+=pre
            for r in rd:
                gaps[g].append(r); g+=1
            g=max(g,30)+4
            for b_ in book:
                gaps[g].append(b_); g+=1
            if flags: gaps[opt.get('fpos',50)].append(f"ds_read_b32 v{VF}, v{VFA}")
            bp=opt.get('bpos',None)
            if bp and not flags:
                gaps[bp[0]].append("s_waitcnt lgkmcnt(0)"); gaps[bp[1]].append("s_barrier")
            if opt.get('pstamp',False): A("s_memtime s[86:87]")
            for i,m in enumerate(mf):
                A(mfma(cur,m))
                for x in gaps[i]: A(x)
            if not (bp and not flags): A("s_waitcnt lgkmcnt(0)")
            if opt.get('pstamp',False):
                if bp: A("s_waitcnt lgkmcnt(0)")
                A("v_writelane_b32 v10, s86, m0"); A("s_add_u32 m0, m0, 1")
                if par==1: A("s_cmp_lt_u32 s39, 9")
            if not flags and not bp: A("s_barrier")
        A(f"s_cbranch_scc1 L_loop{dh}")
        if flags:
            A(f"s_branch L_tail{dh}")
            for tag in (f"{dh}e",f"{dh}o",f"{dh}t"): c_slow(tag)
            A(f"L_tail{dh}:")
        stamp(3)
        def K(setn,ti_list,sl): return [mfma(setn,m) for ti in ti_list for m in grp(ti,sl)]
        K18=lambda s: K(0,(0,1),s)
        K19=lambda s: K(1,(0,1),s)
        T18=lambda sl: K(0,(2,),sl)
        T19=lambda sl: K(1,(2,),sl)
        ph1=K18(0)+K18(1)+K18(2)+K18(3)+K18(4)
        rd=[f"v_add_u32 v{VXA}, s47, v{VXL+1}"]+reads(1,VWE)
        st=[]
        for ti in range(2):
            st.append(f"ds_read_b128 v[{SR+ti*4}:{SR+ti*4+3}], v{VST} offset:{tiles[ti]*64}")
            st.append(f"ds_read_b128 v[{TR+ti*4}:{TR+ti*4+3}], v{VST} offset:{320+tiles[ti]*64}")
        rd=rd+st
        g0=0
        pg=[[] for _ in ph1]
        if flags:
            fg=fl_gaps(f"{dh}t",signal=False)
            for q in range(4): pg[q]+=fg[q]
            g0=3
        nslots=len(ph1)-g0-4
        ri=0
        for i in range(g0,len(ph1)):
            rem=len(rd)-ri; left=max(1,len(ph1)-3-i)
            k=min(rem,2 if rem>left else 1)
            for _ in range(k): pg[i].append(rd[ri]); ri+=1
        assert ri==len(rd)
        for i,m in enumerate(ph1):
            A(m)
            for x in pg[i]: A(x)
        A("s_waitcnt lgkmcnt(0)")
        for m in K19(0): A(m)
        slots=[K19(1)+K18(5)[:3], K19(2)+K18(5)[3:], K19(3)+K18(6)[:3], K19(4)+K18(6)[3:],
               K19(5)+K18(7)[:2], K19(6)+K18(7)[2:], K19(7)+T18(0)+T18(1), T19(0)+T19(1)+T18(2),
               T19(2)+T18(3)+T19(3), []]
        assert sum(len(x) for x in slots)+len(ph1)+len(K19(0))==110
        S4=acc(1,0); T4=acc(1,1)
        def epi_head(a,Sa,Ta,b,Sb,Tb):
            o=[]
            for (r,S,T) in ((a,Sa,Ta),(b,Sb,Tb)):
                for h in range(2):
                    o.append(f"v_pk_fma_f32 v[{r+2*h}:{r+2*h+1}], v[{r+2*h}:{r+2*h+1}], v[{S+2*h}:{S+2*h+1}], v[{T+2*h}:{T+2*h+1}]")
            return o
        def epi_body(a,b,mfl,extra,pend=None):
            o=[]
            tr=[f"v_exp_f32 v{E+i}, v{r}" for i,r in enumerate([a,a+1,a+2,a+3,b,b+1,b+2,b+3])]
            mid=[f"v_pk_fma_f32 v[{E+2*h}:{E+2*h+1}], v[{E+2*h}:{E+2*h+1}], s[52:53], s[52:53]" for h in range(4)]
            tr2=[f"v_rcp_f32 v{E+i}, v{E+i}" for i in range(8)]
            mfl=list(mfl) if not opt.get('nomf',False) else []
            n=len(mfl)
            pos=sorted(opt.get('mpos',[0,2,4,8,10,12,1,9,3,11,5,13,6,14])[:n])
            mi=0
            for i,t in enumerate(tr+tr2):
                if i==8: o+=mid
                if i in pos: o.append(mfl[mi]); mi+=1
                o.append(t)
                if pend and i==opt.get('spos',5): o.append(pend)
            o+=extra
            for h,r in enumerate([a,a+2,b,b+2]):
                o.append(f"v_pk_mul_f32 v[{r}:{r+1}], v[{r}:{r+1}], v[{E+2*h}:{E+2*h+1}] neg_lo:[1,0] neg_hi:[1,0]")
            o.append(f"v_cvt_pk_bf16_f32 v{a}, v{a}, v{a+1}"); o.append(f"v_cvt_pk_bf16_f32 v{a+1}, v{a+2}, v{a+3}")
            o.append(f"v_cvt_pk_bf16_f32 v{a+2}, v{b}, v{b+1}"); o.append(f"v_cvt_pk_bf16_f32 v{a+3}, v{b+2}, v{b+3}")
            return o
        def epi_tail(a,vo,sfl,sreg):
            o=[f"v_permlane16_swap_b32 v{a}, v{a+2}", f"v_permlane16_swap_b32 v{a+1}, v{a+3}"]
            if not opt.get('nostore',False): o.append(f"buffer_store_dwordx4 v[{a}:{a+3}], v{vo}, s[28:31], s{sreg} offen {sfl}")
            return o
        items=[(acc(0,s),SR,TR,acc(1,s),SR+4,TR+4,VO,s*1280,"s44",sf) for s in range(8)]
        items+=[(acc(2,2*sp),S4,T4,acc(2,2*sp+1),S4,T4,VO5,(s0+2*sp)*1280,"s43",sf5) for sp in range(2)]
        A("s_nop 3"); A("s_nop 3")
        for x in epi_head(*items[0][:6]): A(x)
        pend=None
        for i,it in enumerate(items):
            a,Sa,Ta,b,Sb,Tb,vo,soff,sbase,sfl=it
            extra=[]
            if i==2:
                extra=[f"ds_read_b128 v[{S4}:{S4+3}], v{VST} offset:{4*64}", f"ds_read_b128 v[{T4}:{T4+3}], v{VST} offset:{320+4*64}"]
            for x in epi_body(a,b,slots[i],extra+[f"s_add_u32 s{45+(i&1)}, {sbase}, {soff}"],pend): A(x)
            pend=None
            if i==7: A("s_waitcnt lgkmcnt(0)")
            if i+1<len(items):
                for x in epi_head(*items[i+1][:6]): A(x)
            else: A("s_nop 1")
            tl=epi_tail(a,vo,sfl,45+(i&1))
            if opt.get('spos',5)>=0 and i+1<len(items) and not opt.get('nostore',False):
                pend=tl.pop()
            for x in tl: A(x)
        if stamps:
            stamp(4)
            A("s_waitcnt vmcnt(0)")
            stamp(5)
            A("s_waitcnt lgkmcnt(0)")
            A(f"s_cmp_eq_u32 s32, {opt.get('stampwave',0)}"); A("s_cbranch_scc0 L_end")
            A("v_mov_b32 v1, 0")
            if stamps=='dbg':
                A(f"s_cmp_eq_u32 s2, {opt.get('dbgwg',77)}"); A("s_cbranch_scc0 L_end")
                A("s_mov_b64 exec, 1")
                for k in range(5):
                    a=60+4*k
                    A(f"s_sub_u32 s44, s{a+4}, s{a}"); A(f"s_sub_u32 s45, s{a+6}, s{a+2}")
                    A("v_mov_b32 v2, s44"); A("v_mov_b32 v3, s45"); A(f"global_store_dwordx2 v1, v[2:3], s[18:19] offset:{k*8}"); A("s_nop 1")
            else:
                if opt.get('pstamp',False):
                    A("v_writelane_b32 v10, s74, m0")
                    A("s_lshl_b32 s44, s2, 8"); A("s_add_u32 s44, s44, 65536"); A("v_lshlrev_b32 v4, 2, v0"); A("v_add_u32 v4, s44, v4")
                    A("global_store_dword v4, v10, s[18:19]")
                A("s_mul_i32 s44, s2, 96"); A("s_add_u32 s18, s18, s44"); A("s_addc_u32 s19, s19, 0")
                for k,a in enumerate(range(60,84,2)):
                    A(f"v_mov_b32 v2, s{a}"); A(f"v_mov_b32 v3, s{a+1}"); A(f"global_store_dwordx2 v1, v[2:3], s[18:19] offset:{k*8}"); A("s_nop 1")
        if dh==0: A("s_endpgm")
    A("L_end:"); A("s_endpgm")
    A('.section .rodata,"a"'); A(".p2align 6"); A(f".amdhsa_kernel {NAME}")
    A(f"  .amdhsa_next_free_vgpr {NV+NA}"); A("  .amdhsa_next_free_sgpr 96"); A(f"  .amdhsa_accum_offset {NV}")
    A("  .amdhsa_group_segment_fixed_size 0"); A("  .amdhsa_kernarg_size 72"); A("  .amdhsa_user_sgpr_count 2")
    A("  .amdhsa_user_sgpr_kernarg_segment_ptr 1"); A("  .amdhsa_system_sgpr_workgroup_id_x 1"); A(".end_amdhsa_kernel")
    return "\n".join(L)+"\n"
if __name__=="__main__":
    opt={}
    for a in sys.argv[2:]:
        k,v=a.split('=',1); opt[k]=eval(v)
    open(sys.argv[1],"w").write(gen(opt))
```
